```python
import torch

def _softmax(x, axis=-1):
    return torch.softmax(x, dim=axis)
def _gelu(x):
    return torch.nn.functional.gelu(x, approximate="tanh")
def _silu(x):
    return torch.nn.functional.silu(x)
def _sigmoid(x):
    return torch.sigmoid(x)
def _layernorm(x, axis=-1, eps=1e-5):
    m = x.mean(dim=axis, keepdim=True)
    v = x.var(dim=axis, keepdim=True, unbiased=False)
    return (x - m) / torch.sqrt(v + eps)
def _scatter_add(tgt, idx, src, axis=0):
    return tgt.clone().index_add_(axis, idx, src)
def _segment_sum(src, seg, n):
    out = torch.zeros((n,) + src.shape[1:], dtype=src.dtype)
    return out.index_add_(0, seg, src)
def _pad(x, pw):
    flat = tuple(v for pair in reversed(pw) for v in pair)
    return torch.nn.functional.pad(x, flat)

kernel_name = 'parallel_sum__ssm_conv_h3__glu_gated_swiglu__prompt'

def setup_inputs():

    _w = (lambda a: (lambda t: t.to(torch.bfloat16) if t.is_floating_point() else t)(torch.as_tensor(a)))
    def _A_setup():
        B, S, D = 1, 2048, 1024
        ks = 4
        return {
            "q": _w((lambda *s: torch.randn(*s, dtype=torch.bfloat16) * 0.05)(B, S, D)),
            "k": _w((lambda *s: torch.randn(*s, dtype=torch.bfloat16) * 0.2)(B, S, D)),
            "v": _w((lambda *s: torch.randn(*s, dtype=torch.bfloat16) * 0.2)(B, S, D)),
            "shift_k": _w((lambda *s: torch.randn(*s, dtype=torch.bfloat16) * 0.2)(D, ks) * 0.5),
            "ssm_k": _w((lambda *s: torch.randn(*s, dtype=torch.bfloat16) * 0.4)(D, S) * (1.0 / S ** 0.5)),
            "ssm_D": _w((lambda *s: torch.randn(*s, dtype=torch.bfloat16) * 0.2)(D)),
        }
    _A_in = _A_setup()

    def _B_setup():
        B, S, D, F = 1, 2048, 1024, 3584
        return {
            "x": _w((lambda *s: torch.randn(*s, dtype=torch.bfloat16) * 0.05)(B, S, D)),
            "w1": _w((lambda *s: torch.randn(*s, dtype=torch.bfloat16) * 0.2)(D, F) * (2.0 / D) ** 0.5),
            "w3": _w((lambda *s: torch.randn(*s, dtype=torch.bfloat16) * 0.2)(D, F) * (2.0 / D) ** 0.5),
            "w2": _w((lambda *s: torch.randn(*s, dtype=torch.bfloat16) * 0.2)(F, D) * (2.0 / F) ** 0.5),
        }
    _B_in = _B_setup()

    return {
        "A_q": _A_in["q"],
        "A_k": _A_in["k"],
        "A_v": _A_in["v"],
        "A_shift_k": _A_in["shift_k"],
        "A_ssm_k": _A_in["ssm_k"],
        "A_ssm_D": _A_in["ssm_D"],
        "B_x": _B_in["x"],
        "B_w1": _B_in["w1"],
        "B_w3": _B_in["w3"],
        "B_w2": _B_in["w2"],
    }

def reference(A_q, A_k, A_v, A_shift_k, A_ssm_k, A_ssm_D, B_x, B_w1, B_w3, B_w2):
    def _A_ref(q, k, v, shift_k, ssm_k, ssm_D):
        B, S, D = q.shape
        ks = shift_k.shape[-1]
        k_pad = _pad(k, ((0, 0), (ks - 1, 0), (0, 0)))
        k_shift = torch.zeros_like(k)
        for t in range(ks):
            k_shift = k_shift + k_pad[:, t:t + S, :] * shift_k[:, ks - 1 - t][None, None, :]
        kv = k_shift * v
        L = 2 * S
        kv_pad = _pad(kv, ((0, 0), (0, S), (0, 0)))
        kf_pad = _pad(ssm_k, ((0, 0), (0, S)))
        kv_f = (lambda x, axes=(-2,-1): torch.fft.rfft2(x.float(), dim=axes))(kv_pad[:, None, :, :], axes=(1, 2))
        kf_f = (lambda x, axes=(-2,-1): torch.fft.rfft2(x.float(), dim=axes))(kf_pad[:, None, :], axes=(1, 2))
        kf_f = (lambda x, *d: x.permute(*d))(kf_f, 1, 2, 0)
        y_f = kv_f * kf_f[None, :, :, :]
        y = (lambda x, s, axes=(-2,-1): torch.fft.irfft2(x, s=s, dim=axes).to(torch.bfloat16))(y_f, (1, L), axes=(1, 2))[:, 0, :S, :]
        y = y + kv * ssm_D[None, None, :]
        return q * y

    def _B_ref(x, w1, w3, w2):
        gate = torch.einsum("bsd,df->bsf", x, w1)
        up = torch.einsum("bsd,df->bsf", x, w3)
        h = _silu(gate) * up
        out = torch.einsum("bsf,fd->bsd", h, w2)
        return out

    x = A_q
    xn = _layernorm(x, axis=-1)
    return x + _A_ref(xn, A_k, A_v, A_shift_k, A_ssm_k, A_ssm_D) + _B_ref(xn, B_w1, B_w3, B_w2)
```

```python
NAME = "parallel_sum__ssm_conv_h3__glu_gated_swiglu__prompt_kernel"
class Asm:
    def __init__(self):
        self.o = []
    def e(self, s):
        for line in s.strip("\n").split("\n"):
            self.o.append(line.strip())
    def __call__(self, s):
        self.e(s)
    def label(self, l):
        self.o.append(l + ":")
    def text(self):
        return "\n".join(self.o) + "\n"

def kernel_begin(a, name):
    a(f".globl {name}"); a(".p2align 8"); a(f".type {name},@function"); a(f"{name}:")

def kernel_desc(a, name, vgpr, sgpr=102, accum=None):
    if accum is None:
        accum = (vgpr + 3)//4*4
    a(f".amdhsa_kernel {name}")
    a(f"  .amdhsa_next_free_vgpr {vgpr}"); a(f"  .amdhsa_next_free_sgpr {sgpr}"); a(f"  .amdhsa_accum_offset {accum}")
    a("  .amdhsa_group_segment_fixed_size 0"); a("  .amdhsa_kernarg_size 104"); a("  .amdhsa_user_sgpr_count 2")
    a("  .amdhsa_user_sgpr_kernarg_segment_ptr 1"); a("  .amdhsa_system_sgpr_workgroup_id_x 1"); a(".end_amdhsa_kernel")

def srd(a, s, lo, hi, nbytes):
    a(f"s_mov_b32 s{s}, s{lo}"); a(f"s_and_b32 s{s+1}, s{hi}, 0xffff"); a(f"s_mov_b32 s{s+2}, {nbytes}"); a(f"s_mov_b32 s{s+3}, 0x20000")
```

```python
import sys
from asmlib import Asm, kernel_begin, kernel_desc, srd

MB = 1 << 20
S, D, F = 2048, 1024, 3584
WS_XN = 0
WS_UR0 = 4 * MB
WS_UR1 = 8 * MB
WS_H = 16 * MB
WS_ZT = 32 * MB
WS_BYTES = 268435456

KA = dict(q=0, k=8, v=16, shk=24, ssmk=32, ssmd=40, bx=48, w1=56, w3=64, w2=72, out=80, dbg=88, ws=96)


TIMING = False
EXP = ''
def stamp(a, idx):
    if TIMING:
        a(f"s_memtime s[{64+4*idx}:{65+4*idx}]")
        a(f"s_memrealtime s[{66+4*idx}:{67+4*idx}]")

def stamp_flush(a, n, wgsel=0, lbl="x", wavereg="s24"):
    if not TIMING:
        return
    a("s_waitcnt vmcnt(0) lgkmcnt(0)")
    stamp(a, n)
    a("s_load_dwordx2 s[60:61], s[0:1], 88")
    a("s_waitcnt lgkmcnt(0)")
    a(f"s_cmp_lg_u32 s2, {wgsel}")
    a(f"s_cbranch_scc1 TS_skip_{lbl}")
    a(f"s_lshl_b32 s62, {wavereg}, 5")
    a("v_mov_b32 v250, s62")
    for i in range(n):
        a(f"s_sub_u32 s63, s{64+4*(i+1)}, s{64+4*i}")
        a("v_mov_b32 v251, s63")
        a(f"global_store_dword v250, v251, s[60:61] offset:{8*i}")
        a(f"s_sub_u32 s63, s{66+4*(i+1)}, s{66+4*i}")
        a("v_mov_b32 v252, s63")
        a(f"global_store_dword v250, v252, s[60:61] offset:{8*i+4}")
        a("s_nop 1")
    a.label(f"TS_skip_{lbl}")

def bf16_round_scalar(a, r):
    a(f"v_cvt_pk_bf16_f32 v{r}, v{r}, v{r}")
    a(f"v_lshlrev_b32 v{r}, 16, v{r}")


def gen_prep(a, name):
    kernel_begin(a, name)
    a("s_cmp_ge_u32 s2, 256")
    a("s_cbranch_scc1 P_end")
    a("s_load_dwordx4 s[4:7], s[0:1], 0")
    a("s_load_dwordx4 s[8:11], s[0:1], 16")
    a("s_load_dwordx2 s[12:13], s[0:1], 96")
    a("v_lshrrev_b32 v1, 6, v0")
    a("v_and_b32 v2, 63, v0")
    a("v_readfirstlane_b32 s14, v1")
    a("s_waitcnt lgkmcnt(0)")
    srd(a, 16, 12, 13, 64 * MB)
    a("s_cmp_ge_u32 s2, 128")
    a("s_cbranch_scc1 P_kv")
    srd(a, 20, 4, 5, S * D * 2)
    a("v_and_b32 v3, 15, v2")
    a("v_lshrrev_b32 v4, 4, v2")
    a("s_lshl_b32 s15, s2, 4")
    a("v_add_u32 v5, s15, v3")
    a("v_lshlrev_b32 v5, 11, v5")
    a("v_lshlrev_b32 v6, 4, v4")
    a("v_add_u32 v5, v5, v6")
    a("s_lshl_b32 s24, s14, 9")
    for i in range(8):
        a(f"buffer_load_dwordx4 v[{16+4*i}:{19+4*i}], v5, s[20:23], s24 offen offset:{64*i}")
    a("v_lshlrev_b32 v7, 6, v3")
    a("v_lshlrev_b32 v8, 2, v4")
    a("v_add_u32 v7, v7, v8")
    a("s_lshl_b32 s25, s14, 4")
    a("v_add_u32 v7, s25, v7")
    a("v_lshlrev_b32 v8, 6, v3")
    a("v_mov_b32 v10, 0")
    a("v_mov_b32 v11, 0")
    for i in range(8):
        a(f"s_waitcnt vmcnt({7-i})")
        for j in range(4):
            src = 16 + 4*i + j
            lo = 64 + 8*i + 2*j
            a(f"v_lshlrev_b32 v{lo}, 16, v{src}")
            a(f"v_and_b32 v{lo+1}, 0xffff0000, v{src}")
            a(f"v_add_f32 v10, v10, v{lo}")
            a(f"v_add_f32 v11, v11, v{lo+1}")
    a("v_add_f32 v10, v10, v11")
    a("ds_write_b32 v7, v10")
    a("s_waitcnt lgkmcnt(0)")
    a("s_barrier")
    for j in range(4):
        a(f"ds_read_b128 v[{16+4*j}:{19+4*j}], v8 offset:{16*j}")
    a("s_waitcnt lgkmcnt(0)")
    for j in range(8):
        a(f"v_add_f32 v{16+j}, v{16+j}, v{24+j}")
    for j in range(4):
        a(f"v_add_f32 v{16+j}, v{16+j}, v{20+j}")
    a("v_add_f32 v16, v16, v18"); a("v_add_f32 v17, v17, v19"); a("v_add_f32 v16, v16, v17")
    a("v_mul_f32 v12, 0x3a800000, v16")
    a("v_mov_b32 v10, 0")
    a("v_mov_b32 v11, 0")
    for j in range(32):
        a(f"v_sub_f32 v14, v{64+2*j}, v12")
        a(f"v_sub_f32 v15, v{65+2*j}, v12")
        a("v_fmac_f32 v10, v14, v14")
        a("v_fmac_f32 v11, v15, v15")
    a("v_add_f32 v10, v10, v11")
    a("ds_write_b32 v7, v10 offset:1024")
    a("s_waitcnt lgkmcnt(0)")
    a("s_barrier")
    for j in range(4):
        a(f"ds_read_b128 v[{16+4*j}:{19+4*j}], v8 offset:{1024+16*j}")
    a("s_waitcnt lgkmcnt(0)")
    for j in range(8):
        a(f"v_add_f32 v{16+j}, v{16+j}, v{24+j}")
    for j in range(4):
        a(f"v_add_f32 v{16+j}, v{16+j}, v{20+j}")
    a("v_add_f32 v16, v16, v18"); a("v_add_f32 v17, v17, v19"); a("v_add_f32 v16, v16, v17")
    a("v_mul_f32 v13, 0x3a800000, v16")
    bf16_round_scalar(a, 12)
    bf16_round_scalar(a, 13)
    a("v_add_f32 v13, 0x3727c5ac, v13")
    bf16_round_scalar(a, 13)
    a("v_sqrt_f32 v13, v13")
    a("s_nop 0")
    bf16_round_scalar(a, 13)
    a("v_rcp_f32 v13, v13")
    a("s_lshr_b32 s26, s2, 4")
    a("s_and_b32 s27, s2, 15")
    a("s_lshl_b32 s26, s26, 19")
    a("s_lshl_b32 s27, s27, 10")
    a("s_add_u32 s26, s26, s27")
    a("s_lshl_b32 s27, s14, 17")
    a("s_add_u32 s26, s26, s27")
    if WS_XN:
        a(f"s_add_u32 s26, s26, {WS_XN}")
    a("v_lshlrev_b32 v9, 4, v2")
    for i in range(8):
        for j in range(4):
            lo = 64 + 8*i + 2*j
            dst = 16 + 4*i + j
            a(f"v_sub_f32 v14, v{lo}, v12")
            a(f"v_sub_f32 v15, v{lo+1}, v12")
            a("v_cvt_pk_bf16_f32 v14, v14, v15")
            a("v_and_b32 v15, 0xffff0000, v14")
            a("v_lshlrev_b32 v14, 16, v14")
            a("v_mul_f32 v14, v14, v13")
            a("v_mul_f32 v15, v15, v13")
            a(f"v_cvt_pk_bf16_f32 v{dst}, v14, v15")
        a(f"buffer_store_dwordx4 v[{16+4*i}:{19+4*i}], v9, s[16:19], s26 offen")
        if i < 7:
            a("s_add_u32 s26, s26, 16384")
    a("s_endpgm")

    a.label("P_kv")
    srd(a, 20, 6, 7, S * D * 2)
    srd(a, 24, 8, 9, S * D * 2)
    srd(a, 28, 10, 11, D * 4 * 2)
    a("s_sub_u32 s15, s2, 128")
    a("s_lshl_b32 s15, s15, 2")
    a("s_add_u32 s15, s15, s14")
    a("s_lshr_b32 s32, s15, 4")
    a("s_and_b32 s33, s15, 15")
    a("v_lshrrev_b32 v3, 3, v2")
    a("v_and_b32 v4, 7, v2")
    a("s_lshl_b32 s34, s32, 6")
    a("v_lshlrev_b32 v5, 3, v3")
    a("v_add_u32 v5, s34, v5")
    a("s_lshl_b32 s35, s33, 6")
    a("v_lshlrev_b32 v6, 3, v4")
    a("v_add_u32 v6, s35, v6")
    a("v_subrev_u32 v7, 4, v5")
    a("v_lshlrev_b32 v7, 11, v7")
    a("v_lshlrev_b32 v8, 1, v6")
    a("v_add_u32 v7, v7, v8")
    a("v_lshlrev_b32 v8, 3, v6")
    WB = 200
    for j in range(4):
        a(f"buffer_load_dwordx4 v[{WB+4*j}:{WB+3+4*j}], v8, s[28:31], 0 offen offset:{16*j}")
    KB = 32
    VB = 80
    for j in range(12):
        a(f"v_add_u32 v{16+j}, {2048*j}, v7")
    for j in range(12):
        a(f"buffer_load_dwordx4 v[{KB+4*j}:{KB+3+4*j}], v{16+j}, s[20:23], 0 offen")
    for j in range(9):
        a(f"buffer_load_dwordx4 v[{VB+4*j}:{VB+3+4*j}], v{16+3+j}, s[24:27], 0 offen")
    a("v_lshlrev_b32 v9, 12, v6")
    a("v_lshlrev_b32 v10, 1, v5")
    a("v_sub_u32 v10, 4080, v10")
    a("v_add_u32 v9, v9, v10")
    a(f"s_mov_b32 s36, {WS_UR0}")
    a(f"s_mov_b32 s37, {WS_UR1}")
    a("s_waitcnt vmcnt(0)")
    KU = 120
    VU = 144
    WU = 162
    U = 170
    O = 216
    for dc in range(4):
        for j in range(12):
            a(f"v_lshlrev_b32 v{KU+2*j}, 16, v{KB+4*j+dc}")
            a(f"v_and_b32 v{KU+2*j+1}, 0xffff0000, v{KB+4*j+dc}")
        for j in range(9):
            a(f"v_lshlrev_b32 v{VU+2*j}, 16, v{VB+4*j+dc}")
            a(f"v_and_b32 v{VU+2*j+1}, 0xffff0000, v{VB+4*j+dc}")
        for h in range(2):
            ch = 2*dc + h
            a(f"v_lshlrev_b32 v{WU+4*h+0}, 16, v{WB+2*ch}")
            a(f"v_and_b32 v{WU+4*h+1}, 0xffff0000, v{WB+2*ch}")
            a(f"v_lshlrev_b32 v{WU+4*h+2}, 16, v{WB+2*ch+1}")
            a(f"v_and_b32 v{WU+4*h+3}, 0xffff0000, v{WB+2*ch+1}")
        for h in range(2):
            for j in range(9):
                u = U + 2*j + h
                a(f"v_mul_f32 v{u}, v{KU+2*(j+0)+h}, v{WU+4*h+3}")
                a(f"v_fmac_f32 v{u}, v{KU+2*(j+1)+h}, v{WU+4*h+2}")
                a(f"v_fmac_f32 v{u}, v{KU+2*(j+2)+h}, v{WU+4*h+1}")
                a(f"v_fmac_f32 v{u}, v{KU+2*(j+3)+h}, v{WU+4*h+0}")
                a(f"v_mul_f32 v{u}, v{u}, v{VU+2*j+h}")
        for h in range(2):
            ch = 2*dc + h
            o0 = O + 8*h
            o1 = O + 8*h + 4
            def uu(m):
                return U + 2*(m+1) + h
            for e in range(4):
                a(f"v_cvt_pk_bf16_f32 v{o0+e}, v{uu(7-2*e)}, v{uu(6-2*e)}")
                a(f"v_cvt_pk_bf16_f32 v{o1+e}, v{uu(6-2*e)}, v{uu(5-2*e)}")
            a(f"v_add_u32 v{11+h}, {4096*ch}, v9")
            a(f"buffer_store_dwordx4 v[{o0}:{o0+3}], v{11+h}, s[16:19], s36 offen")
            a(f"buffer_store_dwordx4 v[{o1}:{o1+3}], v{11+h}, s[16:19], s37 offen")
        a("s_nop 1")
    a.label("P_end")
    a("s_endpgm")


def untile_h(t):
    t = t.view(16, 112, 8, 4, 16, 2, 4)
    return t.permute(0, 2, 4, 1, 5, 3, 6).reshape(S, F)

G1_ACC = lambda tt, wt: 16 * tt + 4 * wt
G1_TOK = lambda s, tt: 128 + 48 * s + 4 * tt
G1_WT = lambda s, wt: 128 + 48 * s + 32 + 4 * wt


def g1_reads(slot, fs):
    hi = slot >> 1
    so = (slot & 1) * 32768
    L = []
    for wt in range(4):
        mat, jj = wt >> 1, wt & 1
        addr = 228 + 2 * jj + hi
        r = G1_WT(fs, wt)
        for half in range(2):
            L.append(f"ds_read_b64_tr_b16 v[{r+2*half}:{r+2*half+1}], v{addr} offset:{so + mat*8192 + half*1024}")
    for tt in range(8):
        r = G1_TOK(fs, tt)
        L.append(f"ds_read_b128 v[{r}:{r+3}], v{226+hi} offset:{so + tt*1024}")
    return L


def g1_dma(slot):
    sb = slot * 32768
    return [
        [f"s_add_u32 m0, s27, {sb}", "s_nop 0", "buffer_load_dwordx4 v224, s[12:15], s25 offen lds"],
        ["buffer_load_dwordx4 v224, s[12:15], s25 offen offset:1024 lds", "s_add_u32 s25, s25, 16384"],
        [f"s_add_u32 m0, s28, {sb}", "s_nop 0", "buffer_load_dwordx4 v225, s[16:19], s26 offen lds"],
        [f"s_add_u32 m0, s28, {sb+8192}", "s_nop 0", "buffer_load_dwordx4 v225, s[20:23], s26 offen lds", f"s_add_u32 s26, s26, {32*7168}"],
    ]


def g1_stage(a, i4, vm, dma, read, grp, barrier=True):
    fs = i4 & 1
    w = []
    if vm is not None:
        w.append(f"vmcnt({vm})")
    w.append("lgkmcnt(0)")
    a("s_waitcnt " + " ".join(w))
    if barrier:
        a("s_barrier")
    extras = {k: [] for k in range(32)}
    rd = g1_reads((i4 + 1) & 3, fs ^ 1) if read else []
    dm = g1_dma(i4) if dma else []
    if "noread" in EXP and vm == 8 and dma: rd = []
    if "nodma" in EXP: dm = []
    if grp == 0:
        rpos = list(range(0, 16)); dpos = [17, 20, 23, 26]
    else:
        rpos = list(range(8, 24)); dpos = [0, 2, 4, 6]
    for p, ins in zip(rpos, rd):
        extras[p].append(ins)
    for p, g in zip(dpos, dm):
        extras[p].extend(g)
    k = 0
    for tt in range(8):
        for wt in range(4):
            ac = G1_ACC(tt, wt)
            a(f"v_mfma_f32_16x16x32_bf16 v[{ac}:{ac+3}], v[{G1_WT(fs,wt)}:{G1_WT(fs,wt)+3}], v[{G1_TOK(fs,tt)}:{G1_TOK(fs,tt)+3}], v[{ac}:{ac+3}]")
            for ins in extras[k]:
                a(ins)
            k += 1


def g1_epilogue(a):
    a("s_nop 7"); a("s_nop 7")
    a("s_mov_b32 s31, 0xbfb8aa3b")
    for tt in range(8):
        o = 128 + 4 * (tt & 3)
        T = 160
        for jj in range(2):
            for r in range(4):
                g = G1_ACC(tt, jj) + r
                a(f"v_mul_f32 v{T+4*jj+r}, s31, v{g}")
        for x in range(8):
            a(f"v_exp_f32 v{T+x}, v{T+x}")
        for x in range(8):
            a(f"v_add_f32 v{T+x}, 1.0, v{T+x}")
        for x in range(8):
            a(f"v_rcp_f32 v{T+x}, v{T+x}")
        for jj in range(2):
            for r in range(4):
                g = G1_ACC(tt, jj) + r
                a(f"v_mul_f32 v{T+4*jj+r}, v{T+4*jj+r}, v{g}")
        for jj in range(2):
            for r in range(4):
                u = G1_ACC(tt, 2 + jj) + r
                a(f"v_mul_f32 v{T+4*jj+r}, v{T+4*jj+r}, v{u}")
        for x in range(4):
            a(f"v_cvt_pk_bf16_f32 v{o+x}, v{T+2*x}, v{T+2*x+1}")
        if tt == 4:
            a("s_add_u32 s30, s30, 4096")
        a(f"buffer_store_dwordx4 v[{o}:{o+3}], v224, s[12:15], s30 offen offset:{(tt&3)*1024}")


def gen_gemm1(a, name, with_conv=True):
    kernel_begin(a, name)
    a("s_cmp_ge_u32 s2, 256")
    a("s_cbranch_scc1 G1_end")
    a("s_load_dwordx2 s[4:5], s[0:1], 96")
    a("s_load_dwordx4 s[8:11], s[0:1], 56")
    a("v_lshrrev_b32 v1, 6, v0")
    a("v_and_b32 v2, 63, v0")
    a("v_readfirstlane_b32 s24, v1")
    a("s_and_b32 s3, s2, 7")
    a("s_lshr_b32 s29, s2, 3")
    a("s_cmp_ge_u32 s29, 28")
    a("s_cbranch_scc1 G1_conv")
    stamp(a, 0)
    a("s_waitcnt lgkmcnt(0)")
    srd(a, 12, 4, 5, 64 * MB)
    srd(a, 16, 8, 9, D * F * 2)
    srd(a, 20, 10, 11, D * F * 2)
    a("s_and_b32 s32, s3, 1"); a("s_lshl_b32 s32, s32, 2"); a("s_and_b32 s33, s29, 3"); a("s_add_u32 s32, s32, s33")
    a("s_lshr_b32 s33, s3, 1"); a("s_mul_i32 s33, s33, 7"); a("s_lshr_b32 s34, s29, 2"); a("s_add_u32 s33, s33, s34")
    a("s_lshr_b32 s35, s24, 2")
    a("s_and_b32 s36, s24, 3")
    a("s_lshl_b32 s25, s32, 19")
    a("s_lshl_b32 s34, s24, 11")
    a("s_add_u32 s25, s25, s34")
    if WS_XN:
        a(f"s_add_u32 s25, s25, {WS_XN}")
    a("s_mov_b32 s26, 0")
    a("s_lshl_b32 s27, s24, 11")
    a("s_lshl_b32 s28, s24, 10")
    a("s_add_u32 s28, s28, 16384")
    a("v_lshlrev_b32 v224, 4, v2")
    a("v_lshrrev_b32 v3, 4, v2")
    a("s_lshr_b32 s34, s24, 1"); a("s_and_b32 s34, s34, 1"); a("s_lshl_b32 s34, s34, 2")
    a("v_or_b32 v4, s34, v3")
    a("v_lshlrev_b32 v4, 1, v4")
    a("v_and_b32 v5, 15, v2")
    a("v_xor_b32 v5, v5, v4")
    a("v_lshlrev_b32 v5, 4, v5")
    a("s_lshl_b32 s34, s24, 2")
    a("v_add_u32 v6, s34, v3")
    a("v_mul_u32_u24 v6, 7168, v6")
    a("v_add_u32 v6, v6, v5")
    a("s_lshl_b32 s34, s33, 8")
    a("v_add_u32 v225, s34, v6")
    for st in range(4):
        for g in g1_dma(st):
            for ins in g:
                a(ins)
    a("s_lshl_b32 s34, s35, 13")
    a("v_add_u32 v226, s34, v224")
    a("v_add_u32 v227, 0x10000, v226")
    a("v_lshrrev_b32 v3, 4, v2")
    a("v_bfe_u32 v4, v2, 2, 2")
    a("v_and_b32 v5, 3, v2")
    a("v_and_b32 v6, 1, v3"); a("v_lshlrev_b32 v6, 2, v6"); a("v_or_b32 v6, v6, v4")
    a("v_lshlrev_b32 v7, 3, v3"); a("v_add_u32 v7, v7, v4"); a("v_lshlrev_b32 v7, 8, v7")
    a("v_lshlrev_b32 v5, 3, v5"); a("v_add_u32 v7, v7, v5"); a("v_add_u32 v7, 16384, v7")
    a("s_lshl_b32 s34, s36, 1")
    for jj in range(2):
        a(f"s_add_u32 s37, s34, {jj}")
        a("v_xor_b32 v8, s37, v6")
        a("v_lshlrev_b32 v8, 5, v8")
        a(f"v_add_u32 v{228+2*jj}, v7, v8")
        a(f"v_add_u32 v{229+2*jj}, 0x10000, v{228+2*jj}")
    a("s_lshl_b32 s30, s32, 1"); a("s_add_u32 s30, s30, s35"); a("s_mul_i32 s30, s30, 112")
    a("s_lshl_b32 s34, s33, 2"); a("s_add_u32 s30, s30, s34"); a("s_add_u32 s30, s30, s36")
    a("s_lshl_b32 s30, s30, 13"); a(f"s_add_u32 s30, s30, {WS_H}")
    for r in range(128):
        a(f"v_mov_b32 v{r}, 0")
    a("s_waitcnt vmcnt(12)")
    a("s_barrier")
    stamp(a, 1)
    for ins in g1_reads(0, 0):
        a(ins)
    if "noread" in EXP:
        a("s_waitcnt lgkmcnt(0)")
        for ins in g1_reads(0, 1):
            a(ins)
    a("s_cmp_ge_u32 s24, 4")
    a("s_cbranch_scc1 G1_grpB")
    for grp in range(2):
        if grp == 1:
            a.label("G1_grpB")
        a("s_mov_b32 s38, 0")
        a.label(f"G1_loop{grp}")
        for i4 in range(4):
            g1_stage(a, i4, 8, True, True, grp)
        a("s_add_u32 s38, s38, 1")
        a("s_cmp_lt_u32 s38, 7")
        a(f"s_cbranch_scc1 G1_loop{grp}")
        g1_stage(a, 0, 8, False, True, grp)
        g1_stage(a, 1, 4, False, True, grp)
        g1_stage(a, 2, 0, False, True, grp)
        g1_stage(a, 3, None, False, False, grp, barrier=False)
        if grp == 0:
            a("s_branch G1_epi")
    a.label("G1_epi")
    stamp(a, 2)
    g1_epilogue(a)
    stamp_flush(a, 3, 0, "g1")
    a("s_endpgm")
    a.label("G1_conv")
    if with_conv:
        gen_conv(a)
    a.label("G1_end")
    a("s_endpgm")


def gen_conv(a):
    a("s_endpgm")


CV_CH = 20736
CV_X = 4 * CV_CH

def conv_body(a, sw="s24", sg="s2", pfx="CV"):
    ACC = 176
    def PR(st, g): return 32 + 64 * st + 4 * g
    def UR(st, e): return 32 + 64 * st + 32 + 4 * e
    aP, aU, vL16, vD, vT = 160, 161, 162, 163, 164
    MK = 168
    a(f"s_and_b32 s48, {sw}, 3")
    a(f"s_lshr_b32 s49, {sw}, 2")
    a(f"s_lshl_b32 s50, {sg}, 2")
    a("s_add_u32 s50, s50, s48")
    a(f"s_mul_i32 s51, s48, {CV_CH}")
    a("s_lshl_b32 s52, s50, 12")
    a(f"v_lshlrev_b32 v{vL16}, 4, v2")
    a("s_lshl_b32 s53, s49, 2")
    a(f"v_add_u32 v{vT}, s53, v{vL16}")
    for sl in range(2):
        a(f"s_mul_i32 s54, s49, {2*4160}")
        a("s_add_u32 s54, s54, s51")
        a(f"s_add_u32 m0, s54, {sl*4160}")
        a(f"s_add_u32 s55, s52, {WS_UR0 if sl == 0 else WS_UR1}")
        for i in range(4):
            a(f"buffer_load_dwordx4 v{vT}, s[12:15], s55 offen offset:{1024*i} lds")
    a("s_lshl_b32 s54, s49, 11")
    a("s_add_u32 s55, s52, s54")
    a("s_add_u32 s54, s54, s51")
    a(f"s_add_u32 m0, s54, {4*4160}")
    a("s_nop 0")
    for i in range(2):
        a(f"buffer_load_dwordx4 v{vL16}, s[40:43], s55 offen offset:{1024*i} lds")
    a("s_lshl_b32 s54, s50, 1")
    a(f"v_mov_b32 v{vD}, s54")
    a(f"buffer_load_ushort v{vD}, v{vD}, s[44:47], 0 offen")
    a("v_and_b32 v3, 15, v2")
    a("v_lshrrev_b32 v4, 4, v2")
    a("v_and_b32 v5, 1, v4")
    a("v_lshrrev_b32 v6, 1, v4")
    a("v_not_b32 v7, v3"); a("v_and_b32 v7, 3, v7")
    a("v_mul_u32_u24 v8, 4158, v7")
    a("v_lshlrev_b32 v9, 5, v6"); a("v_sub_u32 v8, v8, v9")
    a("v_lshlrev_b32 v9, 1, v3"); a("v_sub_u32 v8, v8, v9")
    a("v_lshlrev_b32 v9, 4, v5"); a("v_add_u32 v8, v8, v9")
    a("s_lshl_b32 s54, s49, 8")
    a("s_sub_u32 s55, s51, s54")
    a("s_add_u32 s56, s55, 318")
    a(f"v_add_u32 v{aP}, s56, v8")
    a("v_lshlrev_b32 v8, 5, v3")
    a("v_lshlrev_b32 v9, 5, v6"); a("v_sub_u32 v8, v8, v9")
    a("v_lshlrev_b32 v9, 4, v5"); a("v_add_u32 v8, v8, v9")
    a(f"s_add_u32 s56, s55, {16640-192}")
    a(f"v_add_u32 v{aU}, s56, v8")
    a("v_lshlrev_b32 v8, 3, v5"); a("v_sub_u32 v8, v3, v8")
    a("v_lshlrev_b32 v9, 6, v6"); a("v_add_u32 v8, v8, v9")
    a("s_lshl_b32 s54, s49, 6"); a("v_add_u32 v8, s54, v8")
    for e in range(4):
        a(f"v_cmp_le_i32 vcc, {2*e}, v8")
        a("s_nop 1")
        a(f"v_cndmask_b32_e64 v9, 0, -1, vcc")
        a(f"v_cmp_le_i32 vcc, {2*e+1}, v8")
        a("s_nop 1")
        a(f"v_cndmask_b32_e64 v10, 0, -1, vcc")
        a("v_and_b32 v9, 0xffff, v9")
        a("v_and_b32 v10, 0xffff0000, v10")
        a(f"v_or_b32 v{MK+e}, v9, v10")
    a("v_sub_u32 v8, v3, v6")
    a("s_lshl_b32 s54, s49, 3")
    for r in range(4):
        a(f"s_add_u32 s55, s54, {2*r}")
        a(f"v_cmp_le_i32 s[{58+2*r}:{59+2*r}], s55, v8")
    for r in range(32):
        a(f"v_mov_b32 v{ACC+r}, 0")
    a("s_waitcnt vmcnt(0)")
    a("s_barrier")

    def reads(r, st):
        L = []
        for e in range(8):
            L.append(f"ds_read_b128 v[{UR(st,e)}:{UR(st,e)+3}], v{aU} offset:{512*e + 64*(3-r)}")
        for g in range(8):
            off = 512 * (7 - g) + 64 * (3 - r)
            L.append(f"ds_read_b64 v[{PR(st,g)}:{PR(st,g)+1}], v{aP} offset:{off}")
            L.append(f"ds_read_b64 v[{PR(st,g)+2}:{PR(st,g)+3}], v{aP} offset:{off+8}")
        return L
    for ins in reads(0, 0):
        a(ins)
    for r in range(4):
        st = r & 1
        a("s_waitcnt lgkmcnt(0)")
        for e in range(4):
            a(f"v_cndmask_b32 v{UR(st,0)+e}, 0, v{UR(st,0)+e}, s[{58+2*r}:{59+2*r}]")
        if r == 0:
            for e in range(4):
                a(f"v_and_b32 v{PR(st,0)+e}, v{PR(st,0)+e}, v{MK+e}")
        nxt = reads(r + 1, st ^ 1) if r < 3 else []
        pairs = [(g, e) for g in range(8) for e in range(8) if g + e <= 7]
        pairs.sort(key=lambda ge: (1 if (ge[0] == 0 or ge[1] == 0) else 0))
        for k, (g, e) in enumerate(pairs):
            ac = ACC + 4 * (g + e)
            a(f"v_mfma_f32_16x16x32_bf16 v[{ac}:{ac+3}], v[{PR(st,g)}:{PR(st,g)+3}], v[{UR(st,e)}:{UR(st,e)+3}], v[{ac}:{ac+3}]")
            if k < len(nxt):
                a(nxt[k])
    a("s_nop 7"); a("s_nop 7")
    a(f"s_lshl_b32 s54, {sw}, 12")
    a(f"s_add_u32 s54, s54, {CV_X}")
    a(f"v_add_u32 v{vT}, s54, v{vL16}")
    a(f"s_xor_b32 s55, {sw}, 4")
    a("s_lshl_b32 s55, s55, 12")
    a(f"s_add_u32 s55, s55, {CV_X}")
    a(f"v_add_u32 v{vT+1}, s55, v{vL16}")
    a("s_cmp_eq_u32 s49, 0")
    a(f"s_cbranch_scc1 {pfx}_h0")
    for i in range(4):
        a(f"ds_write_b128 v{vT}, v[{ACC+4*i}:{ACC+4*i+3}] offset:{1024*i}")
    a("s_nop 1")
    for r in range(16):
        a(f"v_mov_b32 v{ACC+r}, v{ACC+16+r}")
    a(f"s_branch {pfx}_h1")
    a.label(f"{pfx}_h0")
    for i in range(4):
        a(f"ds_write_b128 v{vT}, v[{ACC+16+4*i}:{ACC+16+4*i+3}] offset:{1024*i}")
    a.label(f"{pfx}_h1")
    a("s_waitcnt lgkmcnt(0)")
    a("s_barrier")
    for i in range(4):
        a(f"ds_read_b128 v[{32+4*i}:{32+4*i+3}], v{vT+1} offset:{1024*i}")
    a("v_lshlrev_b32 v8, 5, v3"); a("v_lshlrev_b32 v9, 3, v4"); a("v_add_u32 v8, v8, v9")
    a("s_lshl_b32 s54, s49, 11")
    a(f"s_add_u32 s55, s51, {4088 - 3*512}")
    a("s_sub_u32 s55, s55, s54")
    a("v_sub_u32 v9, s55, v8")
    for ii in range(4):
        a(f"ds_read_b64 v[{48+2*ii}:{48+2*ii+1}], v9 offset:{512*(3-ii)}")
    a("s_add_u32 s55, s52, s54")
    a(f"s_add_u32 s55, s55, {WS_ZT}")
    a(f"v_lshlrev_b32 v{vD}, 16, v{vD}")
    a("s_waitcnt lgkmcnt(0)")
    for ii in range(4):
        y = ACC + 4 * ii
        for r in range(4):
            a(f"v_add_f32 v{y+r}, v{y+r}, v{32+4*ii+r}")
        a(f"v_cvt_pk_bf16_f32 v56, v{y}, v{y+1}")
        a(f"v_cvt_pk_bf16_f32 v57, v{y+2}, v{y+3}")
        a(f"v_lshlrev_b32 v{y}, 16, v56"); a(f"v_and_b32 v{y+1}, 0xffff0000, v56")
        a(f"v_lshlrev_b32 v{y+2}, 16, v57"); a(f"v_and_b32 v{y+3}, 0xffff0000, v57")
        k0, k1 = 48 + 2 * ii, 48 + 2 * ii + 1
        a(f"v_and_b32 v58, 0xffff0000, v{k1}"); a(f"v_lshlrev_b32 v59, 16, v{k1}")
        a(f"v_and_b32 v60, 0xffff0000, v{k0}"); a(f"v_lshlrev_b32 v61, 16, v{k0}")
        for r in range(4):
            a(f"v_mul_f32 v{58+r}, v{58+r}, v{vD}")
        a("v_cvt_pk_bf16_f32 v56, v58, v59"); a("v_cvt_pk_bf16_f32 v57, v60, v61")
        a("v_lshlrev_b32 v58, 16, v56"); a("v_and_b32 v59, 0xffff0000, v56")
        a("v_lshlrev_b32 v60, 16, v57"); a("v_and_b32 v61, 0xffff0000, v57")
        for r in range(4):
            a(f"v_add_f32 v{y+r}, v{y+r}, v{58+r}")
        a(f"v_cvt_pk_bf16_f32 v{64+2*ii}, v{y}, v{y+1}")
        a(f"v_cvt_pk_bf16_f32 v{65+2*ii}, v{y+2}, v{y+3}")
        a(f"buffer_store_dwordx2 v[{64+2*ii}:{65+2*ii}], v8, s[12:15], s55 offen offset:{512*ii}")


def gen_conv_kernel(a, name):
    kernel_begin(a, name)
    a("s_cmp_ge_u32 s2, 256")
    a("s_cbranch_scc1 CK_end")
    a("s_load_dwordx2 s[4:5], s[0:1], 96")
    a("s_load_dwordx4 s[8:11], s[0:1], 32")
    a("v_lshrrev_b32 v1, 6, v0")
    a("v_and_b32 v2, 63, v0")
    a("v_readfirstlane_b32 s24, v1")
    a("s_waitcnt lgkmcnt(0)")
    srd(a, 12, 4, 5, 64 * MB)
    srd(a, 40, 8, 9, D * S * 2)
    srd(a, 44, 10, 11, D * 2)
    conv_body(a)
    a.label("CK_end")
    a("s_endpgm")


G2_SLOT = 24576
G2_AB = 136
G2_R = 6
G2_Z = G2_SLOT * G2_R
G2_TOK = lambda s, tt: 32 + 24 * s + 4 * tt
G2_WT = lambda s, ct: 32 + 24 * s + 16 + 4 * ct

def g2_reads(slot, fs):
    rng, so = divmod(slot * G2_SLOT, 49152)
    L = []
    for ct in range(2):
        r = G2_WT(fs, ct)
        for half in range(2):
            L.append(f"ds_read_b64_tr_b16 v[{r+2*half}:{r+2*half+1}], v{100+3*ct+rng} offset:{so + half*2048}")
    for tt in range(4):
        r = G2_TOK(fs, tt)
        L.append(f"ds_read_b128 v[{r}:{r+3}], v{96+rng} offset:{so + tt*1024}")
    return L

def g2_dma(slot):
    sb = slot * G2_SLOT
    return [
        [f"s_add_u32 m0, s27, {sb}", "s_nop 0", "buffer_load_dwordx4 v110, s[12:15], s25 offen lds"],
        ["buffer_load_dwordx4 v110, s[12:15], s25 offen offset:1024 lds", "s_add_u32 s25, s25, 16384"],
        [f"s_add_u32 m0, s28, {sb}", "s_nop 0", "buffer_load_dwordx4 v111, s[16:19], s26 offen lds", f"s_add_u32 s26, s26, {64*2048}"],
    ]

def g2_stage(a, i6, vm, dma, read, barrier=True):
    fs = i6 & 1
    w = []
    if vm is not None:
        w.append(f"vmcnt({vm})")
    w.append("lgkmcnt(0)")
    a("s_waitcnt " + " ".join(w))
    if barrier:
        a("s_barrier")
    rd = g2_reads((i6 + 1) % G2_R, fs ^ 1) if read else []
    dm = g2_dma(i6) if dma else []
    extras = {k: [] for k in range(8)}
    for k, ins in enumerate(rd):
        extras[k].append(ins)
    for p, g in zip([0, 2, 4], dm):
        extras[p] = g + extras[p]
    k = 0
    for tt in range(4):
        for ct in range(2):
            ac = G2_AB + 8 * tt + 4 * ct
            a(f"v_mfma_f32_16x16x32_bf16 v[{ac}:{ac+3}], v[{G2_WT(fs,ct)}:{G2_WT(fs,ct)+3}], v[{G2_TOK(fs,tt)}:{G2_TOK(fs,tt)+3}], v[{ac}:{ac+3}]")
            for ins in extras[k]:
                a(ins)
            k += 1


def gen_gemm2(a, name):
    kernel_begin(a, name)
    a("s_cmp_ge_u32 s2, 256")
    a("s_cbranch_scc1 G2_end")
    a("s_load_dwordx2 s[4:5], s[0:1], 96")
    a("s_load_dwordx4 s[8:11], s[0:1], 72")
    a("s_load_dwordx2 s[6:7], s[0:1], 0")
    a("v_lshrrev_b32 v1, 6, v0")
    a("v_and_b32 v2, 63, v0")
    a("v_readfirstlane_b32 s24, v1")
    a("s_and_b32 s3, s2, 7"); a("s_lshr_b32 s29, s2, 3")
    a("s_lshr_b32 s32, s3, 1"); a("s_lshl_b32 s32, s32, 2"); a("s_lshr_b32 s33, s29, 3"); a("s_add_u32 s32, s32, s33")
    a("s_and_b32 s33, s3, 1"); a("s_lshl_b32 s33, s33, 3"); a("s_and_b32 s34, s29, 7"); a("s_add_u32 s33, s33, s34")
    a("s_lshr_b32 s35, s24, 2")
    a("s_bfe_u32 s36, s24, 0x10001")
    a("s_and_b32 s37, s24, 1")
    a("s_waitcnt lgkmcnt(0)")
    srd(a, 12, 4, 5, 64 * MB)
    srd(a, 16, 8, 9, F * D * 2)
    srd(a, 20, 10, 11, S * D * 2)
    srd(a, 40, 6, 7, S * D * 2)
    stamp(a, 0)
    a(f"s_mul_i32 s25, s32, {112*8192}")
    a("s_lshl_b32 s34, s24, 11")
    a("s_add_u32 s25, s25, s34")
    a(f"s_add_u32 s25, s25, {WS_H}")
    a("s_mov_b32 s26, 0")
    a("s_lshl_b32 s27, s24, 11")
    a("s_lshl_b32 s28, s24, 10"); a("s_add_u32 s28, s28, 16384")
    a("v_lshlrev_b32 v110, 4, v2")
    a("v_lshrrev_b32 v3, 3, v2")
    a("v_bfe_u32 v4, v3, 1, 2"); a("v_lshlrev_b32 v4, 1, v4")
    a("v_and_b32 v5, 7, v2"); a("v_xor_b32 v5, v5, v4"); a("v_lshlrev_b32 v5, 4, v5")
    a("s_lshl_b32 s34, s24, 3")
    a("v_add_u32 v6, s34, v3"); a("v_lshlrev_b32 v6, 11, v6"); a("v_add_u32 v6, v6, v5")
    a("s_lshl_b32 s34, s33, 7")
    a("v_add_u32 v111, s34, v6")
    for st in range(G2_R):
        for g in g2_dma(st):
            for ins in g:
                a(ins)
    a("v_lshrrev_b32 v3, 4, v2"); a("v_lshlrev_b32 v3, 12, v3")
    a("v_and_b32 v4, 15, v2"); a("v_lshlrev_b32 v4, 4, v4"); a("v_add_u32 v3, v3, v4")
    a("s_lshl_b32 s34, s33, 6"); a("s_lshl_b32 s38, s24, 3"); a("s_add_u32 s34, s34, s38")
    a("s_lshl_b32 s34, s34, 12")
    a("s_lshl_b32 s38, s32, 8"); a("s_add_u32 s34, s34, s38"); a(f"s_add_u32 s34, s34, {WS_ZT}")
    a("s_lshl_b32 s38, s24, 11")
    for i in range(2):
        a(f"s_add_u32 m0, s38, {G2_Z + 1024*i}")
        a(f"s_add_u32 s39, s34, {4*4096*i}")
        a("buffer_load_dwordx4 v3, s[12:15], s39 offen lds")
    a("v_lshrrev_b32 v3, 4, v2")
    a("v_and_b32 v4, 1, v3"); a("v_lshlrev_b32 v4, 1, v4"); a("v_lshrrev_b32 v5, 1, v3"); a("v_or_b32 v4, v4, v5")
    a("v_and_b32 v5, 15, v2")
    a("s_lshl_b32 s34, s32, 7"); a("s_lshl_b32 s38, s36, 6"); a("s_add_u32 s34, s34, s38"); a("s_lshl_b32 s38, s35, 5"); a("s_add_u32 s34, s34, s38")
    a("v_add_u32 v6, s34, v5"); a("v_lshlrev_b32 v6, 11, v6")
    a("v_lshlrev_b32 v7, 4, v4"); a("v_add_u32 v6, v6, v7")
    a("s_lshl_b32 s38, s33, 7"); a("s_lshl_b32 s39, s37, 6"); a("s_add_u32 s38, s38, s39")
    a("v_add_u32 v112, s38, v6")
    a("v_add_u32 v113, 32768, v112")
    a("buffer_load_dwordx4 v[116:119], v112, s[40:43], 0 offen")
    a("buffer_load_dwordx4 v[120:123], v113, s[40:43], 0 offen")
    a("s_lshr_b32 s38, s34, 4")
    a("s_lshr_b32 s39, s38, 4"); a("s_lshl_b32 s39, s39, 5")
    a("s_lshl_b32 s48, s33, 1"); a("s_add_u32 s39, s39, s48"); a("s_add_u32 s39, s39, s37")
    a("s_lshl_b32 s39, s39, 4"); a("s_and_b32 s38, s38, 15"); a("s_add_u32 s39, s39, s38"); a("s_lshl_b32 s39, s39, 10")
    if WS_XN:
        a(f"s_add_u32 s39, s39, {WS_XN}")
    a("v_lshlrev_b32 v7, 4, v4"); a("v_add_u32 v7, v7, v5"); a("v_lshlrev_b32 v7, 4, v7")
    a("buffer_load_dwordx4 v[124:127], v7, s[12:15], s39 offen")
    a("buffer_load_dwordx4 v[128:131], v7, s[12:15], s39 offen offset:1024")
    a("s_lshl_b32 s34, s35, 13"); a("s_lshl_b32 s38, s36, 12"); a("s_add_u32 s34, s34, s38")
    a("v_add_u32 v96, s34, v110"); a("v_add_u32 v97, 49152, v96"); a("v_add_u32 v98, 98304, v96")
    a("v_lshrrev_b32 v3, 4, v2"); a("v_bfe_u32 v6, v2, 2, 2"); a("v_and_b32 v7, 3, v2")
    a("v_and_b32 v8, 1, v3"); a("v_lshlrev_b32 v8, 1, v8"); a("v_lshrrev_b32 v9, 1, v6"); a("v_or_b32 v8, v8, v9")
    a("v_lshlrev_b32 v9, 2, v3"); a("v_add_u32 v9, v9, v6"); a("v_lshlrev_b32 v9, 7, v9")
    a("v_lshlrev_b32 v7, 3, v7"); a("v_add_u32 v9, v9, v7")
    a("s_lshl_b32 s34, s35, 12"); a("s_add_u32 s34, s34, 16384"); a("v_add_u32 v9, s34, v9")
    a("s_lshl_b32 s34, s37, 1")
    for ct in range(2):
        a(f"s_add_u32 s38, s34, {ct}")
        a("v_xor_b32 v10, s38, v8"); a("v_lshlrev_b32 v10, 5, v10")
        a(f"v_add_u32 v{100+3*ct}, v9, v10"); a(f"v_add_u32 v{101+3*ct}, 49152, v{100+3*ct}"); a(f"v_add_u32 v{102+3*ct}, 98304, v{100+3*ct}")
    a("v_lshlrev_b32 v9, 3, v4"); a("v_add_u32 v9, v9, v6"); a("v_lshlrev_b32 v9, 8, v9")
    a("v_add_u32 v9, v9, v7")
    a("s_lshl_b32 s34, s37, 13"); a("s_lshl_b32 s38, s36, 7"); a("s_add_u32 s34, s34, s38"); a("s_lshl_b32 s38, s35, 6"); a("s_add_u32 s34, s34, s38")
    a(f"s_add_u32 s34, s34, {G2_Z}")
    a("v_add_u32 v114, s34, v9")
    for r in range(32):
        a(f"v_mov_b32 v{G2_AB+r}, 0")
    a("s_waitcnt vmcnt(21)")
    a("s_barrier")
    stamp(a, 1)
    for ins in g2_reads(0, 0):
        a(ins)
    a("s_mov_b32 s38, 0")
    for i in range(6):
        g2_stage(a, i, 18 if i < 5 else 12, True, True)
    a.label("G2_loop")
    for i6 in range(6):
        g2_stage(a, i6, 12, True, True)
    a("s_add_u32 s38, s38, 1")
    a("s_cmp_lt_u32 s38, 7")
    a("s_cbranch_scc1 G2_loop")
    g2_stage(a, 0, 12, True, True)
    g2_stage(a, 1, 12, True, True)
    g2_stage(a, 2, 12, False, True)
    g2_stage(a, 3, 9, False, True)
    g2_stage(a, 4, 6, False, True)
    g2_stage(a, 5, 3, False, True)
    g2_stage(a, 0, 0, False, True)
    g2_stage(a, 1, None, False, False, barrier=False)
    stamp(a, 2)
    a("s_nop 7"); a("s_nop 7")
    a("s_barrier")
    a("s_lshl_b32 s34, s24, 12"); a("v_add_u32 v3, s34, v110")
    a("s_xor_b32 s34, s24, 4"); a("s_lshl_b32 s34, s34, 12"); a("v_add_u32 v4, s34, v110")
    a("s_cmp_eq_u32 s35, 0")
    a("s_cbranch_scc1 G2_x0")
    for i in range(4):
        a(f"ds_write_b128 v3, v[{G2_AB+4*i}:{G2_AB+4*i+3}] offset:{1024*i}")
    a("s_nop 1")
    for r in range(16):
        a(f"v_mov_b32 v{G2_AB+r}, v{G2_AB+16+r}")
    a("s_branch G2_x1")
    a.label("G2_x0")
    for i in range(4):
        a(f"ds_write_b128 v3, v[{G2_AB+16+4*i}:{G2_AB+16+4*i+3}] offset:{1024*i}")
    a.label("G2_x1")
    a("s_waitcnt lgkmcnt(0)")
    a("s_barrier")
    for i in range(4):
        a(f"ds_read_b128 v[{32+4*i}:{32+4*i+3}], v4 offset:{1024*i}")
    for t2 in range(2):
        a(f"ds_read_b64_tr_b16 v[{48+4*t2}:{49+4*t2}], v114 offset:{32*t2}")
        a(f"ds_read_b64_tr_b16 v[{50+4*t2}:{51+4*t2}], v114 offset:{32*t2 + 4*256}")
    a("s_waitcnt lgkmcnt(0)")
    for r in range(16):
        a(f"v_add_f32 v{G2_AB+r}, v{G2_AB+r}, v{32+r}")
    for t2 in range(2):
        b = G2_AB + 8 * t2
        a(f"v_cvt_pk_bf16_f32 v56, v{b}, v{b+1}"); a(f"v_cvt_pk_bf16_f32 v57, v{b+2}, v{b+3}")
        a(f"v_cvt_pk_bf16_f32 v58, v{b+4}, v{b+5}"); a(f"v_cvt_pk_bf16_f32 v59, v{b+6}, v{b+7}")
        a("s_nop 1")
        a("v_permlane16_swap_b32 v56, v58")
        a("v_permlane16_swap_b32 v57, v59")
        X = 116 + 4 * t2; XN = 124 + 4 * t2; Z = 48 + 4 * t2
        for e in range(4):
            a(f"v_lshlrev_b32 v60, 16, v{XN+e}"); a(f"v_and_b32 v61, 0xffff0000, v{XN+e}")
            a(f"v_lshlrev_b32 v62, 16, v{Z+e}"); a(f"v_and_b32 v63, 0xffff0000, v{Z+e}")
            a("v_mul_f32 v60, v60, v62"); a("v_mul_f32 v61, v61, v63")
            a("v_cvt_pk_bf16_f32 v60, v60, v61")
            a("v_and_b32 v61, 0xffff0000, v60"); a("v_lshlrev_b32 v60, 16, v60")
            a(f"v_lshlrev_b32 v62, 16, v{X+e}"); a(f"v_and_b32 v63, 0xffff0000, v{X+e}")
            a("v_add_f32 v60, v60, v62"); a("v_add_f32 v61, v61, v63")
            a("v_cvt_pk_bf16_f32 v60, v60, v61")
            a("v_and_b32 v61, 0xffff0000, v60"); a("v_lshlrev_b32 v60, 16, v60")
            a(f"v_lshlrev_b32 v62, 16, v{56+e}"); a(f"v_and_b32 v63, 0xffff0000, v{56+e}")
            a("v_add_f32 v60, v60, v62"); a("v_add_f32 v61, v61, v63")
            a(f"v_cvt_pk_bf16_f32 v{64+4*t2+e}, v60, v61")
        a(f"buffer_store_dwordx4 v[{64+4*t2}:{67+4*t2}], v{112+t2}, s[20:23], 0 offen")
    stamp_flush(a, 3, 0, "g2")
    a.label("G2_end")
    a("s_endpgm")


def main(out, which="all"):
    a = Asm()
    hdr = open("parallel_sum__ssm_conv_h3__glu_gated_swiglu__prompt.s.ref").read().split("; Override")[0]
    a.o.append(hdr.rstrip("\n"))
    launches = []
    launches.append(("prep_kernel", 256, 256, 2048))
    launches.append(("gemm1_kernel", 256, 512, 163840))
    launches.append(("conv_kernel", 256, 512, 131072))
    launches.append(("gemm2_kernel", 256, 512, 163840))
    for k, g, b, l in launches:
        a(f"; @launch kernel={k} grid=({g},1,1) block=({b},1,1) lds={l}")
    a('.amdgcn_target "amdgcn-amd-amdhsa--gfx950"')
    a(".text")
    gen_prep(a, "prep_kernel")
    gen_gemm1(a, "gemm1_kernel")
    gen_conv_kernel(a, "conv_kernel")
    gen_gemm2(a, "gemm2_kernel")
    a('.section .rodata,"a"')
    a(".p2align 6")
    kernel_desc(a, "prep_kernel", 232, 48)
    a(".p2align 6")
    kernel_desc(a, "gemm1_kernel", 256, 96)
    a(".p2align 6")
    kernel_desc(a, "conv_kernel", 208, 96)
    a(".p2align 6")
    kernel_desc(a, "gemm2_kernel", 168, 96)
    open(out, "w").write(a.text())


if __name__ == "__main__":
    if len(sys.argv) > 2 and "T" in sys.argv[2]:
        TIMING = True
    if len(sys.argv) > 3:
        EXP = sys.argv[3]
    main(sys.argv[1] if len(sys.argv) > 1 else "k.s")
```

```python
import sys, re
from asmlib import Asm, kernel_begin, kernel_desc, srd

MB = 1 << 20
S, D, F = 2048, 1024, 3584
WS_ST = 0
WS_MB = 1 * MB
WS_CS = 2 * MB
WS_UR0 = 4 * MB
WS_UR1 = 8 * MB
WS_H = 16 * MB
WS_ZT = 32 * MB
C_PREP, C_Z = 0, 16

TIMING = False
EXP = ""
NAME = "parallel_sum__ssm_conv_h3__glu_gated_swiglu__prompt_kernel"


def opt(name, default):
    for tok in EXP.split(","):
        if tok.startswith(name + "="):
            return [int(x) for x in tok.split("=")[1].split(".")]
    return default


def untile_h(t):
    t = t.view(16, 112, 8, 4, 16, 8)
    return t.permute(0, 2, 4, 1, 3, 5).reshape(S, F)


_sid = [0]
def stamp(a, idx):
    if not TIMING:
        return
    _sid[0] += 1
    l = f"ST_{_sid[0]}"
    a("s_and_b32 s68, s24, 3")
    a("s_cmp_lg_u32 s68, 0")
    a(f"s_cbranch_scc1 {l}")
    a("s_memtime s[64:65]")
    a("s_memrealtime s[66:67]")
    a("s_lshl_b32 s68, s24, 6")
    a("s_lshl_b32 s69, s2, 9")
    a("s_add_u32 s68, s68, s69")
    a(f"s_add_u32 s68, s68, {60*MB + 8*idx}")
    a("v_mov_b32 v254, s68")
    a("s_waitcnt lgkmcnt(0)")
    a("v_mov_b32 v252, s64")
    a("v_mov_b32 v253, s66")
    a("buffer_store_dwordx2 v[252:253], v254, s[12:15], 0 offen")
    a.label(l)


class Vm:
    def __init__(self):
        self.ops = []
    def issue(self, tag):
        self.ops.append(tag)
    def need(self, pred):
        idx = -1
        for i, t in enumerate(self.ops):
            if pred(t):
                idx = i
        return min(len(self.ops) - 1 - idx, 63)


def rnd_bf16(a, r):
    a(f"v_cvt_pk_bf16_f32 v{r}, v{r}, v{r}")
    a(f"v_lshlrev_b32 v{r}, 16, v{r}")


def wave_sum(a, regs):
    steps = [f"row_shr:{sh} row_mask:0xf" for sh in (1, 2, 4, 8)] + ["row_bcast:15 row_mask:0xa", "row_bcast:31 row_mask:0xc"]
    for st in steps:
        a("s_nop 1") if len(regs) < 3 else None
        for r in regs:
            a(f"v_add_f32_dpp v{r}, v{r}, v{r} {st} bank_mask:0xf")
    a("s_nop 1")


_uid = [0]
def signal(a, idx, vt, wave=0):
    _uid[0] += 1
    l = f"SIG_{_uid[0]}"
    a(f"s_cmp_lg_u32 s24, {wave}")
    a(f"s_cbranch_scc1 {l}")
    a(f"v_mov_b32 v{vt}, {4*idx if isinstance(idx, int) else idx}")
    a(f"v_mov_b32 v{vt+1}, 1")
    a("s_mov_b64 s[46:47], exec")
    a("s_mov_b64 exec, 1")
    a(f"global_atomic_add v{vt}, v{vt+1}, s[44:45] sc1")
    a("s_mov_b64 exec, s[46:47]")
    a.label(l)


def _pload(a, vt, mb):
    if mb:
        a(f"buffer_load_dword v{vt+1}, v{vt}, s[12:15], 0 offen sc1")
    else:
        a(f"global_load_dword v{vt+1}, v{vt}, s[44:45] sc1")


def poll_issue(a, idx, vt, mb=False, wave=0):
    _uid[0] += 1
    l = f"PI_{_uid[0]}"
    a(f"s_cmp_lg_u32 s24, {wave}")
    a(f"s_cbranch_scc1 {l}")
    a(f"v_mov_b32 v{vt}, {4*idx if isinstance(idx, int) else idx}")
    _pload(a, vt, mb)
    a.label(l)


def poll_check(a, target, vt, wait=False, mb=False, wave=0):
    _uid[0] += 1
    l = f"PC_{_uid[0]}"
    a(f"s_cmp_lg_u32 s24, {wave}")
    a(f"s_cbranch_scc1 {l}_done")
    if wait:
        a("s_waitcnt vmcnt(0)")
    a("s_mov_b32 s48, 0")
    a.label(f"{l}_chk")
    a(f"v_readfirstlane_b32 s49, v{vt+1}")
    a("s_add_u32 s48, s48, 1")
    a(f"s_cmp_ge_u32 s49, {target}")
    a(f"s_cbranch_scc1 {l}_done")
    a("s_cmp_ge_u32 s48, 0x40000")
    a(f"s_cbranch_scc1 {l}_done")
    a("s_sleep 4")
    _pload(a, vt, mb)
    a("s_waitcnt vmcnt(0)")
    a(f"s_branch {l}_chk")
    a.label(f"{l}_done")


W_RING = 98304
V_T0, V_T1, V_W = 224, 225, 226
V_TB0, V_TB1, V_TA0, V_TA1 = 227, 228, 229, 230
V_WA = 231
V_LANE = 235


class G1:
    def __init__(self, grp):
        self.grp = grp
        self.nw = 8 if grp == 0 else 6
        self.nj = 4 if grp == 0 else 3
        self.j0 = 0 if grp == 0 else 4
        self.fs_size = 16 + 4 * self.nw
        self.fbase = 128
    def acc(self, tt, wt): return (4 * self.nw) * tt + 4 * wt
    def tok(self, fs, tt): return self.fbase + self.fs_size * fs + 4 * tt
    def wt(self, fs, wt): return self.fbase + self.fs_size * fs + 16 + 4 * wt
    def reads(self, st):
        fs = st & 1
        L = []
        slot = st & 3
        for wt in range(self.nw):
            mat, jj = divmod(wt, self.nj)
            r = self.wt(fs, wt)
            for half in range(2):
                L.append(f"ds_read_b64_tr_b16 v[{r+2*half}:{r+2*half+1}], v{V_WA+jj} offset:{slot*16384 + mat*8192 + half*1024}")
        for tt in range(4):
            r = self.tok(fs, tt)
            L.append(f"ds_read_b128 v[{r}:{r+3}], v{V_TA0 + (st & 1)} offset:{tt*2048}")
        return L


def g1_dma_w(st):
    sb = W_RING + (st & 3) * 16384
    g = [[f"s_add_u32 m0, s28, {sb}", "s_nop 0", "buffer_load_dwordx4 v%d, s[16:19], s26 offen lds" % V_W],
         [f"s_add_u32 m0, s28, {sb+8192}", "s_nop 0", "buffer_load_dwordx4 v%d, s[20:23], s26 offen lds" % V_W, f"s_add_u32 s26, s26, {32*7168}"]]
    return g, [("W", st), ("W", st)]


def g1_dma_t(T, hf):
    g = [[f"s_add_u32 m0, s36, {hf*16384}" if hf else "s_mov_b32 m0, s36", f"s_add_u32 s30, s25, {hf*128*2048}",
          "buffer_load_dwordx4 v%d, s[40:43], s30 offen lds" % V_T0],
         ["buffer_load_dwordx4 v%d, s[40:43], s30 offen offset:1024 lds" % V_T1]]
    if hf == 1:
        g[1] += ["s_add_u32 s25, s25, 128",
                 "s_add_u32 s36, s36, 32768", "s_cmp_ge_u32 s36, 98304", "s_cselect_b32 s31, 98304, 0", "s_sub_u32 s36, s36, s31"]
    return g, [("T", T), ("T", T)]


def bg_tasks():
    T = {}
    def chunk(it):
        return T.setdefault(it, (Asm(), []))
    L = V_LANE
    a, tags = chunk(0)
    a("s_lshl_b32 s80, s2, 3"); a("s_lshl_b32 s81, s35, 1"); a("s_add_u32 s80, s80, s81"); a("s_lshl_b32 s81, s80, 11")
    a(f"v_lshlrev_b32 v127, 5, v{L}")
    for t in range(2):
        a(f"buffer_load_dwordx4 v[{208+8*t}:{211+8*t}], v127, s[40:43], s81 offen offset:{2048*t}")
        a(f"buffer_load_dwordx4 v[{212+8*t}:{215+8*t}], v127, s[40:43], s81 offen offset:{2048*t+16}")
        tags += [("BG", 0)] * 2
    def kv_loads(a, tags, p, it):
        for j in range(4):
            a(f"s_mov_b32 s82, {2048*j + 4*p}")
            a(f"buffer_load_dword v{96+j}, v125, s[48:51], s82 offen")
        for j in range(8):
            a(f"s_mov_b32 s82, {2048*j + 4*p}")
            a(f"buffer_load_dword v{100+j}, v126, s[48:51], s82 offen")
        a(f"s_mov_b32 s82, {2048*3 + 4*p}")
        a(f"buffer_load_dword v108, v125, s[52:55], s82 offen")
        for j in range(8):
            a(f"s_mov_b32 s82, {2048*j + 4*p}")
            a(f"buffer_load_dword v{109+j}, v126, s[52:55], s82 offen")
        a(f"buffer_load_dwordx4 v[120:123], v124, s[60:63], 0 offen offset:{16*p}")
        tags += [("BG", it)] * 22
    a, tags = chunk(1)
    a(f"v_lshrrev_b32 v121, 3, v{L}"); a(f"v_and_b32 v122, 7, v{L}")
    a("s_lshl_b32 s82, s29, 6"); a("v_lshlrev_b32 v121, 3, v121"); a("v_add_u32 v121, s82, v121")
    a("s_lshl_b32 s82, s3, 7"); a("s_lshl_b32 s83, s35, 5"); a("s_add_u32 s82, s82, s83")
    a("v_lshlrev_b32 v122, 2, v122"); a("v_add_u32 v122, s82, v122")
    a("v_lshlrev_b32 v126, 11, v121"); a("v_lshlrev_b32 v123, 1, v122"); a("v_add_u32 v126, v126, v123")
    a("v_subrev_u32 v125, 8192, v126")
    a("v_cmp_eq_u32 vcc, 0, v121"); a("v_mov_b32 v123, 0x80000000"); a("v_lshlrev_b32 v124, 3, v122")
    a("v_cndmask_b32 v125, v125, v123, vcc")
    a("v_lshlrev_b32 v250, 12, v122"); a("v_lshlrev_b32 v123, 1, v121"); a("v_sub_u32 v123, 4080, v123"); a("v_add_u32 v250, v250, v123")
    kv_loads(a, tags, 0, 1)
    a, tags = chunk(3)
    for t in range(2):
        X = 208 + 8 * t
        s_, q_ = 236 + t, 238 + t
        a(f"v_lshlrev_b32 v240, 16, v{X}"); a(f"v_and_b32 v241, 0xffff0000, v{X}"); a(f"v_add_f32 v{s_}, v240, v241")
        for j in range(1, 8):
            a(f"v_lshlrev_b32 v240, 16, v{X+j}"); a(f"v_and_b32 v241, 0xffff0000, v{X+j}")
            a(f"v_add_f32 v{s_}, v{s_}, v240"); a(f"v_add_f32 v{s_}, v{s_}, v241")
    wave_sum(a, [236, 237])
    a("v_readlane_b32 s82, v236, 63"); a("v_readlane_b32 s83, v237, 63")
    a("s_nop 1")
    a("v_mov_b32 v236, s82"); a("v_mov_b32 v237, s83")
    a("v_mul_f32 v236, 0x3a800000, v236"); a("v_mul_f32 v237, 0x3a800000, v237")
    for t in range(2):
        X = 208 + 8 * t
        a(f"v_mov_b32 v{238+t}, 0")
        for j in range(8):
            a(f"v_lshlrev_b32 v240, 16, v{X+j}"); a(f"v_and_b32 v241, 0xffff0000, v{X+j}")
            a(f"v_sub_f32 v240, v240, v{236+t}"); a(f"v_sub_f32 v241, v241, v{236+t}")
            a(f"v_fmac_f32 v{238+t}, v240, v240"); a(f"v_fmac_f32 v{238+t}, v241, v241")
    wave_sum(a, [238, 239])
    a("v_readlane_b32 s82, v238, 63"); a("v_readlane_b32 s83, v239, 63")
    a("s_nop 1")
    a("v_mov_b32 v238, s82"); a("v_mov_b32 v239, s83")
    for t in range(2):
        m, v = 236 + t, 238 + t
        a(f"v_mul_f32 v{v}, 0x3a800000, v{v}")
        rnd_bf16(a, m); rnd_bf16(a, v)
        a(f"v_add_f32 v{v}, 0x3727c5ac, v{v}"); rnd_bf16(a, v)
        a(f"v_sqrt_f32 v{v}, v{v}"); a("s_nop 0"); rnd_bf16(a, v)
        a(f"v_rcp_f32 v{v}, v{v}")
    a("s_nop 0")
    a("v_mov_b32 v240, v236"); a("v_mov_b32 v241, v238"); a("v_mov_b32 v242, v237"); a("v_mov_b32 v243, v239"); a("v_mov_b32 v244, 0")
    a("s_lshl_b32 s82, s80, 3")
    if WS_ST: a(f"s_add_u32 s82, s82, {WS_ST}")
    a("s_mov_b64 s[46:47], exec"); a("s_mov_b64 exec, 1")
    a("buffer_store_dwordx4 v[240:243], v244, s[12:15], s82 offen sc1")
    a("buffer_store_dword v244, v244, s[12:15], s70 offen sc1")
    a("s_mov_b64 exec, s[46:47]")
    tags += [("P", 3)] * 2
    def kv_compute(a, tags, p, it):
        for h in range(2):
            un = (lambda d, s_: a(f"v_lshlrev_b32 v{d}, 16, v{s_}")) if h == 0 else (lambda d, s_: a(f"v_and_b32 v{d}, 0xffff0000, v{s_}"))
            W = 208
            a(f"v_lshlrev_b32 v{W}, 16, v{120+2*h}"); a(f"v_and_b32 v{W+1}, 0xffff0000, v{120+2*h}")
            a(f"v_lshlrev_b32 v{W+2}, 16, v{121+2*h}"); a(f"v_and_b32 v{W+3}, 0xffff0000, v{121+2*h}")
            KW = 212
            for j in range(3): un(KW + j, 96 + j)
            O0, O1 = 240, 244 + 0
            O1 = 244
            prev = None
            for j in range(9):
                un(KW + (j + 3) % 4, 96 + j + 3)
                un(216, 108 + j)
                u = 217 + (j & 1)
                a(f"v_mul_f32 v{u}, v{KW + j % 4}, v{W+3}")
                a(f"v_fmac_f32 v{u}, v{KW + (j+1) % 4}, v{W+2}")
                a(f"v_fmac_f32 v{u}, v{KW + (j+2) % 4}, v{W+1}")
                a(f"v_fmac_f32 v{u}, v{KW + (j+3) % 4}, v{W}")
                a(f"v_mul_f32 v{u}, v{u}, v216")
                m = j - 1
                if j >= 1:
                    pu = 217 + ((j - 1) & 1)
                    if m & 1:
                        a(f"v_cvt_pk_bf16_f32 v{O0 + (7-m)//2}, v{u}, v{pu}")
                    else:
                        a(f"v_cvt_pk_bf16_f32 v{O1 + (6-m)//2}, v{u}, v{pu}")
            ch = 2 * p + h
            a(f"v_add_u32 v219, {4096*ch}, v250")
            a(f"s_mov_b32 s82, {WS_UR0}"); a(f"s_mov_b32 s83, {WS_UR1}")
            a(f"buffer_store_dwordx4 v[{O0}:{O0+3}], v219, s[12:15], s82 offen sc1")
            a(f"buffer_store_dwordx4 v[{O1}:{O1+3}], v219, s[12:15], s83 offen sc1")
            a("s_nop 1")
            tags += [("P", it)] * 2
    a, tags = chunk(4); kv_compute(a, tags, 0, 4); kv_loads(a, tags, 1, 4)
    a, tags = chunk(7); kv_compute(a, tags, 1, 7)
    def cs_loads(a, tags, b, it):
        base = 96 + 16 * (b & 1)
        for j in range(4):
            a(f"buffer_load_dwordx4 v[{base+4*j}:{base+4*j+3}], v249, s[72:75], s84 offen")
            a(f"s_add_u32 s84, s84, {16*7168}")
        tags += [("BG", it)] * 4
    def cs_acc(a, b):
        base = 96 + 16 * (b & 1)
        for j in range(4):
            for d in range(4):
                r = base + 4 * j + d
                a(f"v_lshlrev_b32 v216, 16, v{r}"); a(f"v_and_b32 v217, 0xffff0000, v{r}")
                a(f"v_add_f32 v{208+2*d}, v{208+2*d}, v216"); a(f"v_add_f32 v{209+2*d}, v{209+2*d}, v217")
    a, tags = chunk(7)
    a(f"v_lshrrev_b32 v216, 2, v{L}"); a("v_mul_u32_u24 v216, 7168, v216"); a(f"v_and_b32 v217, 3, v{L}"); a("v_lshlrev_b32 v217, 4, v217")
    a("v_add_u32 v249, v216, v217")
    a("s_cmp_ge_u32 s2, 224"); a("s_cselect_b32 s85, 0x7f000000, 0")
    a(f"s_mul_i32 s84, s35, {256*7168}"); a("s_add_u32 s84, s84, s85"); a("s_add_u32 s84, s84, s86")
    for r in range(8): a(f"v_mov_b32 v{208+r}, 0")
    cs_loads(a, tags, 0, 7)
    a, tags = chunk(8); cs_loads(a, tags, 1, 8)
    a, tags = chunk(10); cs_acc(a, 0); cs_loads(a, tags, 2, 10)
    a, tags = chunk(11); cs_acc(a, 1); cs_loads(a, tags, 3, 11)
    a, tags = chunk(13); cs_acc(a, 2)
    a, tags = chunk(14); cs_acc(a, 3)
    for st in ("row_shr:4", "row_shr:8"):
        for r in range(8):
            a(f"v_add_f32_dpp v{208+r}, v{208+r}, v{208+r} {st} row_mask:0xf bank_mask:0xf")
    for r in range(8): a(f"v_mov_b32 v{96+r}, v{208+r}")
    a("s_nop 1")
    for r in range(8): a(f"v_permlane16_swap_b32 v{96+r}, v{208+r}")
    a("s_nop 1")
    for r in range(8): a(f"v_add_f32 v{208+r}, v{208+r}, v{96+r}")
    for r in range(8): a(f"v_mov_b32 v{96+r}, v{208+r}")
    a("s_nop 1")
    for r in range(8): a(f"v_permlane32_swap_b32 v{96+r}, v{208+r}")
    a("s_nop 1")
    for r in range(8): a(f"v_add_f32 v{208+r}, v{208+r}, v{96+r}")
    a(f"v_and_b32 v216, 3, v{L}"); a("v_lshlrev_b32 v216, 5, v216")
    a(f"s_mul_i32 s82, s35, {7168*4}"); a("s_lshl_b32 s83, s2, 7"); a("s_add_u32 s82, s82, s83"); a("s_add_u32 s82, s82, s85"); a(f"s_add_u32 s82, s82, {WS_CS}")
    a("s_mov_b64 s[46:47], exec"); a("s_mov_b64 exec, 0xf000")
    a("buffer_store_dwordx4 v[208:211], v216, s[12:15], s82 offen sc1")
    a("buffer_store_dwordx4 v[212:215], v216, s[12:15], s82 offen offset:16 sc1")
    a("s_mov_b64 exec, s[46:47]")
    tags += [("P", 14)] * 2
    a, tags = chunk(15)
    a(f"v_lshlrev_b32 v216, 4, v{L}")
    a(f"s_mul_i32 s82, s2, {28*1024}"); a(f"s_mul_i32 s83, s35, {7*1024}"); a("s_add_u32 s82, s82, s83")
    for j in range(7):
        a(f"buffer_load_dwordx4 v[96:99], v216, s[76:79], s82 offen")
        a("s_add_u32 s82, s82, 1024")
    tags += [("BG", 15)] * 7
    return {k: (v[0].o, v[1]) for k, v in T.items()}


IT_SIG_PREP = 17
IT_POLL = 27


def g1_stage(g, it, vm, bg):
    a = Asm()
    fs = it & 1
    nst = 32
    if it + 1 < nst:
        n = vm.need(lambda t: (t[0] == "W" and t[1] <= it + 1) or (t[0] == "T" and t[1] <= (it + 1) // 2)
                    or (t[0] in ("BG", "P") and t[1] <= it - 3))
        a(f"s_waitcnt vmcnt({n}) lgkmcnt(0)")
        a("s_barrier")
    else:
        a("s_waitcnt lgkmcnt(0)")
    if it == IT_SIG_PREP and g.grp == 0:
        signal(a, C_PREP, 246)
    if it == IT_POLL and g.grp == 0:
        poll_issue(a, C_PREP, 246)
    if it == IT_POLL + 3 and g.grp == 0:
        poll_check(a, 256, 246)
    pre = []
    if it + 1 < nst and (it + 1) % 2 == 0:
        pre += ["s_add_u32 s37, s37, 32768", "s_cmp_ge_u32 s37, 98304", "s_cselect_b32 s31, 98304, 0", "s_sub_u32 s37, s37, s31",
                f"v_add_u32 v{V_TA0}, s37, v{V_TB0}", f"v_add_u32 v{V_TA1}, s37, v{V_TB1}"]
    rd = g.reads(it + 1) if it + 1 < nst else []
    dm = []
    if it + 4 < nst:
        gg, tags = g1_dma_w(it + 4)
        dm += list(zip(gg, tags))
    if it >= 1 and (it - 1) // 2 + 3 < 16:
        gg, tags = g1_dma_t((it - 1) // 2 + 3, (it - 1) % 2)
        dm += list(zip(gg, tags))
    nm = 4 * g.nw
    extras = {k: [] for k in range(nm)}
    if g.grp == 0:
        r0 = opt("rA", [1, 1]); dpos = opt("dA", [16, 20, 24, 28])
    else:
        r0 = opt("rB", [4, 1]); dpos = opt("dB", [0, 2, 4, 6])
    rpos = [min(r0[0] + i * r0[1], nm - 1) for i in range(len(rd))]
    extras[0] += pre
    for p, ins in zip(rpos, rd):
        extras[p].append(ins)
    order = []
    for p, (grp_ins, tag) in zip(dpos, dm):
        extras[p].extend(grp_ins)
        order.append((p, tag))
    for p, tag in sorted(order, key=lambda x: x[0]):
        vm.issue(tag)
    k = 0
    for tt in range(4):
        for wt in range(g.nw):
            ac = g.acc(tt, wt)
            c = "0" if it == 0 else f"v[{ac}:{ac+3}]"
            a(f"v_mfma_f32_16x16x32_bf16 v[{ac}:{ac+3}], v[{g.wt(fs,wt)}:{g.wt(fs,wt)+3}], v[{g.tok(fs,tt)}:{g.tok(fs,tt)+3}], {c}")
            for ins in extras[k]:
                a(ins)
            k += 1
    if g.grp == 1 and it in bg:
        ins, tags = bg[it]
        a.o.extend(ins)
        for t in tags:
            vm.issue(t)
    return a.o


def emit_looped(a, texts, lblpfx, cnt_sreg, period):
    n = len(texts)
    best = (0, 1)
    for s0 in range(n):
        e = s0
        while e + period < n and texts[e] == texts[e + period]:
            e += 1
        reps = (e - s0) // period + 1
        if reps > best[1]:
            best = (s0, reps)
    s0, reps = best
    for i in range(s0):
        a.o.extend(texts[i])
    nxt = s0
    if reps > 1:
        a(f"s_mov_b32 {cnt_sreg}, 0")
        a.label(f"{lblpfx}_loop")
        for i in range(s0, s0 + period):
            a.o.extend(texts[i])
        a(f"s_add_u32 {cnt_sreg}, {cnt_sreg}, 1")
        a(f"s_cmp_lt_u32 {cnt_sreg}, {reps}")
        a(f"s_cbranch_scc1 {lblpfx}_loop")
        nxt = s0 + reps * period
    for i in range(nxt, n):
        a.o.extend(texts[i])
    return (s0, reps)


CV_B = 32768
CV_CH = 20736
CV_X = CV_B + 4 * CV_CH


def conv_dma(a, vm):
    a("s_and_b32 s50, s24, 3")
    a("s_lshr_b32 s51, s24, 2")
    a("s_lshl_b32 s52, s2, 2")
    a("s_add_u32 s52, s52, s50")
    a(f"s_mul_i32 s53, s50, {CV_CH}")
    a(f"s_add_u32 s53, s53, {CV_B}")
    a("s_lshl_b32 s54, s52, 12")
    a(f"v_lshlrev_b32 v246, 4, v{V_LANE}")
    a("s_lshl_b32 s55, s51, 2")
    a("v_add_u32 v245, s55, v246")
    for sl in range(2):
        a(f"s_mul_i32 s55, s51, {2*4160}")
        a("s_add_u32 s55, s55, s53")
        a(f"s_add_u32 m0, s55, {sl*4160}")
        a(f"s_add_u32 s56, s54, {WS_UR0 if sl == 0 else WS_UR1}")
        for i in range(4):
            a(f"buffer_load_dwordx4 v245, s[12:15], s56 offen offset:{1024*i} sc1 lds")
            vm.issue(("C", 0))
    a("s_lshl_b32 s55, s51, 11")
    a("s_add_u32 s56, s54, s55")
    a("s_add_u32 s55, s55, s53")
    a(f"s_add_u32 m0, s55, {4*4160}")
    a("s_nop 0")
    for i in range(2):
        a(f"buffer_load_dwordx4 v246, s[72:75], s56 offen offset:{1024*i} lds")
        vm.issue(("C", 0))
    a("s_lshl_b32 s55, s52, 1")
    a("v_mov_b32 v247, s55")
    a("buffer_load_ushort v247, v247, s[76:79], 0 offen")
    vm.issue(("C", 0))


def g1_tail_loads(a, g, vm, fs_free):
    B = g.fbase + g.fs_size * fs_free
    L = V_LANE
    a(f"v_and_b32 v{B+24}, 15, v{L}"); a(f"v_lshlrev_b32 v{B+24}, 3, v{B+24}")
    a("s_lshl_b32 s30, s32, 11"); a("s_lshl_b32 s31, s35, 9"); a("s_add_u32 s30, s30, s31")
    if WS_ST: a(f"s_add_u32 s30, s30, {WS_ST}")
    for tt in range(4):
        a(f"buffer_load_dwordx2 v[{B+2*tt}:{B+2*tt+1}], v{B+24}, s[12:15], s30 offen offset:{128*tt} sc1")
        vm.issue(("S", 0))
    a(f"v_lshlrev_b32 v{B+25}, 2, v{L}")
    a("s_mul_i32 s30, s33, 112"); a(f"s_add_u32 s30, s30, {16*g.j0}"); a("s_lshl_b32 s30, s30, 2"); a(f"s_add_u32 s30, s30, {WS_CS}")
    for mat in range(2):
        for p in range(4):
            a(f"s_add_u32 s31, s30, {mat*3584*4 + p*7168*4}")
            a(f"buffer_load_dword v{B+8+4*mat+p}, v{B+25}, s[12:15], s31 offen sc1")
            vm.issue(("S", 0))
    return B


def g1_epilogue(a, g, vm, B):
    nj = g.nj
    L = V_LANE
    O_ = g.fbase + g.fs_size * (1 - (B - g.fbase) // g.fs_size)
    for mat in range(2):
        b = B + 8 + 4 * mat
        a(f"v_add_f32 v{b}, v{b}, v{b+1}"); a(f"v_add_f32 v{b+2}, v{b+2}, v{b+3}"); a(f"v_add_f32 v{b}, v{b}, v{b+2}")
    a(f"v_lshlrev_b32 v{B+24}, 2, v{L}")
    a("s_lshl_b32 s30, s24, 9"); a(f"s_add_u32 s30, s30, {CV_X}")
    a(f"v_add_u32 v{B+24}, s30, v{B+24}")
    a(f"ds_write_b32 v{B+24}, v{B+8}"); a(f"ds_write_b32 v{B+24}, v{B+12} offset:256")
    a(f"v_lshrrev_b32 v{B+25}, 4, v{L}"); a(f"v_lshlrev_b32 v{B+25}, 4, v{B+25}"); a(f"v_add_u32 v{B+25}, s30, v{B+25}")
    CSV = O_
    a("s_waitcnt lgkmcnt(0)")
    for mat in range(2):
        for jj in range(nj):
            r = CSV + 4 * (mat * nj + jj)
            a(f"ds_read_b128 v[{r}:{r+3}], v{B+25} offset:{256*mat + 64*jj}")
    a(f"v_lshrrev_b32 v{B+26}, 4, v{L}")
    a(f"v_and_b32 v{B+27}, 1, v{B+26}"); a(f"v_lshlrev_b32 v{B+27}, 10, v{B+27}")
    a(f"v_lshrrev_b32 v{B+26}, 1, v{B+26}"); a(f"v_lshlrev_b32 v{B+26}, 8, v{B+26}"); a(f"v_add_u32 v{B+27}, v{B+27}, v{B+26}")
    a(f"v_and_b32 v{B+26}, 15, v{L}"); a(f"v_lshlrev_b32 v{B+26}, 4, v{B+26}"); a(f"v_add_u32 v{B+27}, v{B+27}, v{B+26}")
    VST = B + 27
    a("s_mul_i32 s38, s33, 7")
    a("s_lshl_b32 s39, s32, 1"); a("s_lshr_b32 s30, s35, 1"); a("s_add_u32 s39, s39, s30"); a(f"s_mul_i32 s39, s39, {112*8192}")
    a("s_and_b32 s30, s35, 1"); a("s_lshl_b32 s30, s30, 12"); a("s_add_u32 s39, s39, s30"); a(f"s_add_u32 s39, s39, {WS_H}")
    a("s_mov_b32 s83, 0xbfb8aa3b")
    for tt in range(4):
        a(f"v_mul_f32 v{B+8+tt}, s83, v{B+2*tt+1}")
        a(f"v_mul_f32 v{B+12+tt}, v{B+2*tt+1}, v{B+2*tt+1}")
    a("s_waitcnt lgkmcnt(0)")
    T = B + 28
    Ereg = [T + i for i in range(4 * nj)]
    Preg = [O_ + 8 * nj + i for i in range(4 * nj)]
    for tt in range(4):
        m = B + 2 * tt
        for jj in range(nj):
            for r in range(4):
                gg = g.acc(tt, jj) + r
                uu = g.acc(tt, nj + jj) + r
                a(f"v_fma_f32 v{gg}, -v{m}, v{CSV+4*jj+r}, v{gg}")
                a(f"v_fma_f32 v{uu}, -v{m}, v{CSV+4*(nj+jj)+r}, v{uu}")
        for jj in range(nj):
            for r in range(4):
                a(f"v_mul_f32 v{Ereg[4*jj+r]}, v{g.acc(tt,jj)+r}, v{B+8+tt}")
        for i in range(4 * nj):
            a(f"v_exp_f32 v{Ereg[i]}, v{Ereg[i]}")
        for jj in range(nj):
            for r in range(4):
                a(f"v_mul_f32 v{Preg[4*jj+r]}, v{g.acc(tt,jj)+r}, v{g.acc(tt,nj+jj)+r}")
        for i in range(4 * nj):
            a(f"v_add_f32 v{Ereg[i]}, 1.0, v{Ereg[i]}")
        for i in range(4 * nj):
            a(f"v_rcp_f32 v{Ereg[i]}, v{Ereg[i]}")
        for i in range(4 * nj):
            a(f"v_mul_f32 v{Preg[i]}, v{Preg[i]}, v{B+12+tt}")
        for i in range(4 * nj):
            a(f"v_mul_f32 v{Preg[i]}, v{Preg[i]}, v{Ereg[i]}")
        for jj in range(nj):
            a(f"v_cvt_pk_bf16_f32 v{g.acc(tt,jj)}, v{Preg[4*jj]}, v{Preg[4*jj+1]}")
            a(f"v_cvt_pk_bf16_f32 v{g.acc(tt,jj)+1}, v{Preg[4*jj+2]}, v{Preg[4*jj+3]}")
        if tt & 1:
            for jj in range(nj):
                o = g.acc(tt - 1, jj); h1 = g.acc(tt, jj)
                a(f"v_mov_b32 v{o+2}, v{h1}"); a(f"v_mov_b32 v{o+3}, v{h1+1}")
                b = g.j0 + jj
                a(f"s_add_u32 s30, s38, {b}")
                a("s_lshr_b32 s31, s30, 1"); a("s_lshl_b32 s31, s31, 13")
                a(f"v_permlane16_swap_b32 v{o}, v{o+2}")
                a(f"v_permlane16_swap_b32 v{o+1}, v{o+3}")
                a("s_and_b32 s30, s30, 1"); a("s_lshl_b32 s30, s30, 9")
                a("s_add_u32 s30, s30, s31"); a("s_add_u32 s30, s30, s39")
                a(f"buffer_store_dwordx4 v[{o}:{o+3}], v{VST}, s[12:15], s30 offen offset:{(tt-1)*1024} sc1")
                vm.issue(("H", 0))


def conv_compute(a, vm):
    ACC = 176
    def PR(st, g): return 32 + 64 * st + 4 * g
    def UR(st, e): return 32 + 64 * st + 32 + 4 * e
    aP, aU, vL16, vD, vT = 160, 161, 246, 247, 164
    MK = 168
    a(f"v_and_b32 v3, 15, v{V_LANE}")
    a(f"v_lshrrev_b32 v4, 4, v{V_LANE}")
    a("v_and_b32 v5, 1, v4")
    a("v_lshrrev_b32 v6, 1, v4")
    a("v_not_b32 v7, v3"); a("v_and_b32 v7, 3, v7")
    a("v_mul_u32_u24 v8, 4158, v7")
    a("v_lshlrev_b32 v9, 5, v6"); a("v_sub_u32 v8, v8, v9")
    a("v_lshlrev_b32 v9, 1, v3"); a("v_sub_u32 v8, v8, v9")
    a("v_lshlrev_b32 v9, 4, v5"); a("v_add_u32 v8, v8, v9")
    a("s_lshl_b32 s55, s51, 8")
    a("s_sub_u32 s56, s53, s55")
    a("s_add_u32 s57, s56, 318")
    a(f"v_add_u32 v{aP}, s57, v8")
    a("v_lshlrev_b32 v8, 5, v3")
    a("v_lshlrev_b32 v9, 5, v6"); a("v_sub_u32 v8, v8, v9")
    a("v_lshlrev_b32 v9, 4, v5"); a("v_add_u32 v8, v8, v9")
    a(f"s_add_u32 s57, s56, {16640-192}")
    a(f"v_add_u32 v{aU}, s57, v8")
    a("v_lshlrev_b32 v8, 3, v5"); a("v_sub_u32 v8, v3, v8")
    a("v_lshlrev_b32 v9, 6, v6"); a("v_add_u32 v8, v8, v9")
    a("s_lshl_b32 s55, s51, 6"); a("v_add_u32 v8, s55, v8")
    for e in range(4):
        a(f"v_cmp_le_i32 vcc, {2*e}, v8")
        a(f"v_cmp_le_i32 s[46:47], {2*e+1}, v8")
        a("s_nop 1")
        a("v_cndmask_b32_e64 v9, 0, -1, vcc")
        a("v_cndmask_b32_e64 v10, 0, -1, s[46:47]")
        a("v_and_b32 v9, 0xffff, v9")
        a("v_and_b32 v10, 0xffff0000, v10")
        a(f"v_or_b32 v{MK+e}, v9, v10")
    a("v_sub_u32 v8, v3, v6")
    a("s_lshl_b32 s55, s51, 3")
    for r in range(4):
        a(f"s_add_u32 s56, s55, {2*r}")
        a(f"v_cmp_le_i32 s[{88+2*r}:{89+2*r}], s56, v8")
    a("s_barrier")
    stamp(a, 7)

    def reads(r, st):
        L = []
        for e in range(8):
            L.append(f"ds_read_b128 v[{UR(st,e)}:{UR(st,e)+3}], v{aU} offset:{512*e + 64*(3-r)}")
        for g in range(8):
            off = 512 * (7 - g) + 64 * (3 - r)
            L.append(f"ds_read_b64 v[{PR(st,g)}:{PR(st,g)+1}], v{aP} offset:{off}")
            L.append(f"ds_read_b64 v[{PR(st,g)+2}:{PR(st,g)+3}], v{aP} offset:{off+8}")
        return L
    for ins in reads(0, 0):
        a(ins)
    rsig = opt("rsig", [1])[0]
    for r in range(4):
        st = r & 1
        if r == rsig:
            a("s_waitcnt vmcnt(0)")
            a("s_barrier")
            a("s_cmp_lg_u32 s24, 0"); a("s_cbranch_scc1 CV_nosig")
            a("s_lshl_b32 s55, s32, 12"); a(f"s_add_u32 s55, s55, {WS_MB}")
            a(f"v_lshlrev_b32 v162, 7, v{V_LANE}"); a("v_mov_b32 v163, 1")
            a("s_mov_b64 s[46:47], exec"); a("s_mov_b64 exec, 0xffffffff")
            a("buffer_atomic_add v163, v162, s[12:15], s55 offen sc1")
            a("s_mov_b64 exec, s[46:47]")
            a.label("CV_nosig")
        a("s_waitcnt lgkmcnt(0)")
        for e in range(4):
            a(f"v_cndmask_b32 v{UR(st,0)+e}, 0, v{UR(st,0)+e}, s[{88+2*r}:{89+2*r}]")
        if r == 0:
            for e in range(4):
                a(f"v_and_b32 v{PR(st,0)+e}, v{PR(st,0)+e}, v{MK+e}")
        nxt = reads(r + 1, st ^ 1) if r < 3 else []
        pairs = [(g, e) for g in range(8) for e in range(8) if g + e <= 7]
        pairs.sort(key=lambda ge: (1 if (ge[0] == 0 or ge[1] == 0) else 0))
        seen = set()
        for k, (g, e) in enumerate(pairs):
            ac = ACC + 4 * (g + e)
            c = f"v[{ac}:{ac+3}]"
            if r == 0 and (g + e) not in seen:
                c = "0"
            seen.add(g + e)
            a(f"v_mfma_f32_16x16x32_bf16 v[{ac}:{ac+3}], v[{PR(st,g)}:{PR(st,g)+3}], v[{UR(st,e)}:{UR(st,e)+3}], {c}")
            if k < len(nxt):
                a(nxt[k])
    stamp(a, 8)
    a(f"s_lshl_b32 s55, s24, 12")
    a(f"s_add_u32 s55, s55, {CV_X}")
    a(f"v_add_u32 v{vT}, s55, v{vL16}")
    a(f"s_xor_b32 s56, s24, 4")
    a("s_lshl_b32 s56, s56, 12")
    a(f"s_add_u32 s56, s56, {CV_X}")
    a(f"v_add_u32 v{vT+1}, s56, v{vL16}")
    a("s_nop 4")
    a("s_cmp_eq_u32 s51, 0")
    a("s_cbranch_scc1 CV_h0")
    for i in range(4):
        a(f"ds_write_b128 v{vT}, v[{ACC+4*i}:{ACC+4*i+3}] offset:{1024*i}")
    a("s_nop 1")
    for r in range(16):
        a(f"v_mov_b32 v{ACC+r}, v{ACC+16+r}")
    a("s_branch CV_h1")
    a.label("CV_h0")
    for i in range(4):
        a(f"ds_write_b128 v{vT}, v[{ACC+16+4*i}:{ACC+16+4*i+3}] offset:{1024*i}")
    a.label("CV_h1")
    a("s_waitcnt lgkmcnt(0)")
    a("s_barrier")
    for i in range(4):
        a(f"ds_read_b128 v[{32+4*i}:{32+4*i+3}], v{vT+1} offset:{1024*i}")
    a("v_lshlrev_b32 v8, 5, v3"); a("v_lshlrev_b32 v9, 3, v4"); a("v_add_u32 v8, v8, v9")
    a("s_lshl_b32 s55, s51, 11")
    a(f"s_add_u32 s56, s53, {4088 - 3*512}")
    a("s_sub_u32 s56, s56, s55")
    a("v_sub_u32 v9, s56, v8")
    for ii in range(4):
        a(f"ds_read_b64 v[{48+2*ii}:{48+2*ii+1}], v9 offset:{512*(3-ii)}")
    a("s_add_u32 s56, s54, s55")
    a(f"s_add_u32 s56, s56, {WS_ZT}")
    a(f"v_lshlrev_b32 v{vD}, 16, v{vD}")
    a("v_and_b32 v10, 1, v4"); a("v_lshlrev_b32 v10, 9, v10"); a("v_lshrrev_b32 v9, 1, v4"); a("v_lshlrev_b32 v9, 4, v9"); a("v_add_u32 v10, v10, v9")
    a("v_lshlrev_b32 v9, 5, v3"); a("v_add_u32 v10, v10, v9")
    a("s_waitcnt lgkmcnt(0)")
    for ii in range(4):
        y = ACC + 4 * ii
        for r in range(4):
            a(f"v_add_f32 v{y+r}, v{y+r}, v{32+4*ii+r}")
        a(f"v_cvt_pk_bf16_f32 v56, v{y}, v{y+1}")
        a(f"v_cvt_pk_bf16_f32 v57, v{y+2}, v{y+3}")
        a(f"v_lshlrev_b32 v{y}, 16, v56"); a(f"v_and_b32 v{y+1}, 0xffff0000, v56")
        a(f"v_lshlrev_b32 v{y+2}, 16, v57"); a(f"v_and_b32 v{y+3}, 0xffff0000, v57")
        k0, k1 = 48 + 2 * ii, 48 + 2 * ii + 1
        a(f"v_and_b32 v58, 0xffff0000, v{k1}"); a(f"v_lshlrev_b32 v59, 16, v{k1}")
        a(f"v_and_b32 v60, 0xffff0000, v{k0}"); a(f"v_lshlrev_b32 v61, 16, v{k0}")
        for r in range(4):
            a(f"v_mul_f32 v{58+r}, v{58+r}, v{vD}")
        a("v_cvt_pk_bf16_f32 v56, v58, v59"); a("v_cvt_pk_bf16_f32 v57, v60, v61")
        a("v_lshlrev_b32 v58, 16, v56"); a("v_and_b32 v59, 0xffff0000, v56")
        a("v_lshlrev_b32 v60, 16, v57"); a("v_and_b32 v61, 0xffff0000, v57")
        for r in range(4):
            a(f"v_add_f32 v{y+r}, v{y+r}, v{58+r}")
        a(f"v_cvt_pk_bf16_f32 v{64+2*ii}, v{y}, v{y+1}")
        a(f"v_cvt_pk_bf16_f32 v{65+2*ii}, v{y+2}, v{y+3}")
        if ii & 1:
            o = 64 + 2 * (ii - 1)
            a("s_nop 1")
            a(f"v_permlane16_swap_b32 v{o}, v{o+2}")
            a(f"v_permlane16_swap_b32 v{o+1}, v{o+3}")
            a(f"buffer_store_dwordx4 v[{o}:{o+3}], v10, s[12:15], s56 offen offset:{512*(ii-1)} sc1")
            vm.issue(("Z", 0))


G2_SLOT = 24576
G2_AB = 136
G2_R = 6
G2_Z = G2_SLOT * G2_R
G2_TOK = lambda s, tt: 32 + 24 * s + 4 * tt
G2_WT = lambda s, ct: 32 + 24 * s + 16 + 4 * ct
G2_N = 56
IT2_SIG_Z = 3
IT2_POLL_Z = 42


def g2_reads(slot, fs):
    rng, so = divmod(slot * G2_SLOT, 49152)
    L = []
    for ct in range(2):
        r = G2_WT(fs, ct)
        for half in range(2):
            L.append(f"ds_read_b64_tr_b16 v[{r+2*half}:{r+2*half+1}], v{100+3*ct+rng} offset:{so + half*512}")
    for tt in range(4):
        r = G2_TOK(fs, tt)
        L.append(f"ds_read_b128 v[{r}:{r+3}], v{96+rng} offset:{so + tt*1024}")
    return L


def g2_dma_w(st):
    sb = (st % G2_R) * G2_SLOT
    return [[f"s_add_u32 m0, s28, {sb}", "s_nop 0", "buffer_load_dwordx4 v111, s[16:19], s26 offen lds", f"s_add_u32 s26, s26, {64*2048}"]], [("W", st)]


def g2_dma_t(st):
    sb = (st % G2_R) * G2_SLOT
    f = "" if "nosc1h" in EXP else " sc1"
    return [[f"s_add_u32 m0, s27, {sb}", "s_nop 0", f"buffer_load_dwordx4 v110, s[12:15], s25 offen{f} lds"],
            [f"buffer_load_dwordx4 v110, s[12:15], s25 offen offset:1024{f} lds", "s_add_u32 s25, s25, 16384"]], [("T", st), ("T", st)]


def g2_zdma(a, vm):
    a("s_lshl_b32 s38, s24, 11")
    for i in range(2):
        a(f"s_add_u32 m0, s38, {G2_Z + 1024*i}")
        a(f"s_add_u32 s39, s58, {4*4096*i}")
        a("buffer_load_dwordx4 v115, s[12:15], s39 offen sc1 lds")
        vm.issue(("ZT", 0))


def g2_stage(it, vm):
    a = Asm()
    fs = it & 1
    if it + 1 < G2_N:
        n = vm.need(lambda t: (t[0] in ("W", "T") and t[1] <= it + 1) or (t[0] == "Z" and it >= IT2_SIG_Z))
        a(f"s_waitcnt vmcnt({n}) lgkmcnt(0)")
        a("s_barrier")
    else:
        a("s_waitcnt lgkmcnt(0)")
    if it == IT2_SIG_Z:
        a("s_lshr_b32 s38, s2, 4"); a("s_lshl_b32 s38, s38, 2"); a(f"s_add_u32 s38, s38, {4*C_Z}")
        signal(a, "s38", 8)
    if it == IT2_POLL_Z:
        a("s_lshl_b32 s38, s33, 2"); a(f"s_add_u32 s38, s38, {4*C_Z}")
        poll_issue(a, "s38", 8)
    if it == IT2_POLL_Z + 5:
        poll_check(a, 16, 8)
    if it == IT2_POLL_Z + 6:
        g2_zdma(a, vm)
    rd = g2_reads((it + 1) % G2_R, fs ^ 1) if it + 1 < G2_N else []
    dm = []
    if it + G2_R < G2_N:
        for f in (g2_dma_t, g2_dma_w):
            gg, tags = f(it + G2_R)
            dm += list(zip(gg, tags))
    extras = {k: [] for k in range(8)}
    for k, ins in enumerate(rd):
        extras[k].append(ins)
    for p, (g, tag) in zip([0, 2, 4], dm):
        extras[p] = g + extras[p]
        vm.issue(tag)
    k = 0
    for tt in range(4):
        for ct in range(2):
            ac = G2_AB + 8 * tt + 4 * ct
            c = "0" if it == 0 else f"v[{ac}:{ac+3}]"
            a(f"v_mfma_f32_16x16x32_bf16 v[{ac}:{ac+3}], v[{G2_WT(fs,ct)}:{G2_WT(fs,ct)+3}], v[{G2_TOK(fs,tt)}:{G2_TOK(fs,tt)+3}], {c}")
            for ins in extras[k]:
                a(ins)
            k += 1
    return a.o


def gen_fused(a, name):
    kernel_begin(a, name)
    a("s_cmp_ge_u32 s2, 256")
    a("s_cbranch_scc1 F_end")
    a("s_load_dwordx2 s[4:5], s[0:1], 0")
    a("s_load_dwordx4 s[16:19], s[0:1], 56")
    a("s_load_dwordx4 s[44:47], s[0:1], 88")
    a("v_lshrrev_b32 v1, 6, v0")
    a(f"v_and_b32 v{V_LANE}, 63, v0")
    a("v_readfirstlane_b32 s24, v1")
    a(f"v_mov_b32 v2, v{V_LANE}")
    a("v_mov_b32 v246, 0")
    a("s_and_b32 s3, s2, 7")
    a("s_lshr_b32 s29, s2, 3")
    a("s_and_b32 s32, s3, 1"); a("s_lshl_b32 s32, s32, 2"); a("s_and_b32 s33, s29, 3"); a("s_add_u32 s32, s32, s33")
    a("s_lshr_b32 s33, s3, 1"); a("s_lshl_b32 s33, s33, 3"); a("s_lshr_b32 s34, s29, 2"); a("s_add_u32 s33, s33, s34")
    a("s_and_b32 s35, s24, 3")
    a("v_lshrrev_b32 v3, 1, v2")
    a("s_lshr_b32 s34, s24, 1"); a("s_and_b32 s34, s34, 1"); a("s_lshl_b32 s34, s34, 2")
    a("v_xor_b32 v3, s34, v3")
    a("v_mul_u32_u24 v4, 37, v3"); a("v_lshrrev_b32 v4, 8, v4")
    a("v_mul_u32_u24 v9, 7, v4"); a("v_sub_u32 v9, v3, v9")
    a("s_lshl_b32 s34, s24, 2")
    a("v_add_u32 v11, s34, v4")
    a("v_mul_u32_u24 v11, 7168, v11")
    a("v_lshlrev_b32 v9, 5, v9"); a("v_add_u32 v11, v11, v9")
    a("v_and_b32 v9, 1, v2"); a("v_lshlrev_b32 v9, 4, v9"); a("v_add_u32 v11, v11, v9")
    a("s_mul_i32 s34, s33, 224")
    a("v_add_u32 v11, s34, v11")
    a("v_cmp_gt_u32 vcc, 28, v3")
    a("v_mov_b32 v12, 0x80000000")
    a("v_lshrrev_b32 v3, 3, v2"); a("v_lshlrev_b32 v3, 11, v3")
    a(f"v_cndmask_b32 v{V_W}, v12, v11, vcc")
    a("v_and_b32 v4, 7, v2"); a("v_lshrrev_b32 v9, 4, v2")
    a("v_xor_b32 v11, v4, v9"); a("v_lshlrev_b32 v11, 4, v11"); a(f"v_add_u32 v{V_T0}, v3, v11")
    a("v_or_b32 v9, 4, v9"); a("v_xor_b32 v11, v4, v9"); a("v_lshlrev_b32 v11, 4, v11"); a("v_add_u32 v11, v3, v11")
    a(f"v_add_u32 v{V_T1}, {8*2048-1024}, v11")
    a("s_lshl_b32 s25, s32, 19")
    a("s_lshl_b32 s34, s24, 15")
    a("s_add_u32 s25, s25, s34")
    a("s_mov_b32 s26, 0")
    a("s_lshl_b32 s36, s24, 11")
    a("s_lshl_b32 s28, s24, 10")
    a("s_waitcnt lgkmcnt(0)")
    srd(a, 40, 4, 5, S * D * 2)
    srd(a, 12, 46, 47, 64 * MB)
    a("s_cmp_lt_u32 s2, 112")
    a("s_cselect_b32 s72, s16, s18"); a("s_cselect_b32 s73, s17, s19")
    a("s_and_b32 s73, s73, 0xffff"); a(f"s_mov_b32 s74, {D*F*2}"); a("s_mov_b32 s75, 0x20000")
    srd(a, 20, 18, 19, D * F * 2)
    srd(a, 16, 16, 17, D * F * 2)
    stamp(a, 0); stamp(a, 1); stamp(a, 2)
    vms = [Vm(), Vm()]
    def iss(tag, n=1):
        for v in vms:
            for _ in range(n): v.issue(tag)
    def issue(groups):
        gg, tags = groups
        for x in gg:
            for ins in x:
                a(ins)
        for t in tags:
            iss(t)
    issue(g1_dma_w(0)); issue(g1_dma_t(0, 0)); issue(g1_dma_t(0, 1))
    issue(g1_dma_w(1))
    issue(g1_dma_w(2)); issue(g1_dma_t(1, 0)); issue(g1_dma_t(1, 1))
    issue(g1_dma_w(3))
    issue(g1_dma_t(2, 0)); issue(g1_dma_t(2, 1))
    a("s_load_dwordx4 s[4:7], s[0:1], 8")
    a("s_load_dwordx2 s[8:9], s[0:1], 24")
    a("s_load_dwordx2 s[10:11], s[0:1], 72")
    a("s_lshr_b32 s59, s3, 1"); a("s_lshl_b32 s59, s59, 2"); a("s_lshr_b32 s34, s29, 3"); a("s_add_u32 s59, s59, s34")
    a("s_and_b32 s70, s3, 1"); a("s_lshl_b32 s70, s70, 3"); a("s_and_b32 s34, s29, 7"); a("s_add_u32 s70, s70, s34")
    a("s_lshl_b32 s34, s59, 4"); a("s_add_u32 s70, s70, s34"); a("s_lshl_b32 s70, s70, 7"); a(f"s_add_u32 s70, s70, {WS_MB}")
    a("s_cmp_lt_u32 s2, 112"); a("s_cselect_b32 s86, 0, 112"); a("s_sub_u32 s86, s2, s86"); a("s_lshl_b32 s86, s86, 6")
    a("v_and_b32 v3, 15, v2")
    a("v_lshrrev_b32 v4, 4, v2")
    a("v_lshrrev_b32 v9, 1, v3")
    a("v_xor_b32 v9, v9, v4"); a("v_lshlrev_b32 v9, 4, v9")
    a("v_lshlrev_b32 v11, 7, v3"); a("v_add_u32 v11, v11, v9")
    a("s_lshl_b32 s34, s35, 13")
    a(f"v_add_u32 v{V_TB0}, s34, v11")
    a(f"v_xor_b32 v{V_TB1}, 64, v{V_TB0}")
    a("s_mov_b32 s37, 0")
    a(f"v_mov_b32 v{V_TA0}, v{V_TB0}"); a(f"v_mov_b32 v{V_TA1}, v{V_TB1}")
    a("v_bfe_u32 v9, v2, 2, 2")
    a("v_and_b32 v11, 3, v2")
    a("v_mul_u32_u24 v12, 7, v9")
    a("v_and_b32 v13, 1, v4"); a("v_lshlrev_b32 v13, 2, v13")
    a("v_lshlrev_b32 v14, 11, v4"); a("v_lshlrev_b32 v11, 3, v11"); a("v_add_u32 v14, v14, v11"); a(f"v_add_u32 v14, {W_RING}, v14")
    a("s_lshr_b32 s34, s24, 2"); a("s_lshl_b32 s34, s34, 2")
    for jj in range(4):
        a(f"s_add_u32 s30, s34, {jj}")
        a("v_add_u32 v15, s30, v12"); a("v_xor_b32 v15, v15, v13"); a("v_lshlrev_b32 v15, 5, v15")
        a(f"v_add_u32 v{V_WA+jj}, v14, v15")
    a("s_waitcnt lgkmcnt(0)")
    srd(a, 48, 4, 5, S * D * 2)
    srd(a, 52, 6, 7, S * D * 2)
    srd(a, 60, 8, 9, D * 4 * 2)
    srd(a, 76, 10, 11, F * D * 2)
    n0 = vms[0].need(lambda t: t[0] in "WT" and t[1] == 0)
    a(f"s_waitcnt vmcnt({n0})")
    a("s_barrier")
    stamp(a, 3)
    bg = bg_tasks()
    a("s_cmp_ge_u32 s24, 4")
    a("s_cbranch_scc1 F_grpB")
    for grp in range(2):
        g = G1(grp)
        vm = vms[grp]
        if grp == 1:
            a.label("F_grpB")
        for ins in g.reads(0):
            a(ins)
        texts = []
        for it in range(32):
            t = g1_stage(g, it, vm, bg)
            if it == 30:
                pass
            texts.append(t)
        info = emit_looped(a, texts[:31], f"G1L{grp}", "s39", 4)
        print("gemm1 grp", grp, "loop start/reps", info, file=sys.stderr)
        last = texts[31]
        a(last[0])
        a("s_barrier")
        a("s_load_dwordx4 s[4:7], s[0:1], 32")
        B = g1_tail_loads(a, g, vm, 0)
        a("s_waitcnt lgkmcnt(0)")
        srd(a, 72, 4, 5, D * S * 2)
        srd(a, 76, 6, 7, D * 2)
        conv_dma(a, vm)
        a.o.extend(last[1:])
        stamp(a, 4)
        n = vm.need(lambda t: t[0] == "S")
        a(f"s_waitcnt vmcnt({n})")
        stamp(a, 5)
        g1_epilogue(a, g, vm, B)
        stamp(a, 6)
        n = vm.need(lambda t: t[0] == "C")
        a(f"s_waitcnt vmcnt({n})")
        if grp == 0:
            a("s_branch F_conv")
    a.label("F_conv")
    vm = Vm()
    conv_compute(a, vm)
    stamp(a, 9)
    vm = Vm()
    for _ in range(2): vm.issue(("Z", 0))
    a("s_load_dwordx4 s[4:7], s[0:1], 72")
    a("s_load_dwordx2 s[8:9], s[0:1], 0")
    a("v_mov_b32 v2, v%d" % V_LANE)
    a("s_mov_b32 s32, s59")
    a("s_and_b32 s33, s3, 1"); a("s_lshl_b32 s33, s33, 3"); a("s_and_b32 s34, s29, 7"); a("s_add_u32 s33, s33, s34")
    a("s_lshr_b32 s35, s24, 2")
    a("s_bfe_u32 s36, s24, 0x10001")
    a("s_and_b32 s37, s24, 1")
    a(f"s_mul_i32 s25, s32, {112*8192}")
    a("s_lshl_b32 s34, s24, 11")
    a("s_add_u32 s25, s25, s34")
    a(f"s_add_u32 s25, s25, {WS_H}")
    a("s_mov_b32 s26, 0")
    a("s_lshl_b32 s27, s24, 11")
    a("s_lshl_b32 s28, s24, 10"); a("s_add_u32 s28, s28, 16384")
    a("v_lshlrev_b32 v110, 4, v2")
    a("v_lshrrev_b32 v3, 3, v2")
    a("v_bfe_u32 v4, v2, 4, 1"); a("s_and_b32 s34, s24, 1"); a("s_lshl_b32 s34, s34, 1"); a("v_or_b32 v4, s34, v4"); a("v_lshlrev_b32 v4, 1, v4")
    a("v_and_b32 v5, 7, v2"); a("v_xor_b32 v5, v5, v4"); a("v_lshlrev_b32 v5, 4, v5")
    a("s_lshl_b32 s34, s24, 3")
    a("v_add_u32 v6, s34, v3"); a("v_lshlrev_b32 v6, 11, v6"); a("v_add_u32 v6, v6, v5")
    a("s_lshl_b32 s34, s33, 7")
    a("v_add_u32 v111, s34, v6")
    a("s_waitcnt lgkmcnt(0)")
    srd(a, 16, 4, 5, F * D * 2)
    srd(a, 20, 6, 7, S * D * 2)
    srd(a, 40, 8, 9, S * D * 2)
    poll_issue(a, "s70", 12, mb=True)
    a("s_barrier")
    def issue2(groups):
        gg, tags = groups
        for x in gg:
            for ins in x:
                a(ins)
        for t in tags:
            vm.issue(t)
    for st in range(G2_R):
        issue2(g2_dma_w(st))
    a("v_lshrrev_b32 v3, 4, v2"); a("v_lshlrev_b32 v3, 12, v3")
    a("v_and_b32 v4, 15, v2"); a("v_lshlrev_b32 v4, 4, v4"); a("v_add_u32 v115, v3, v4")
    a("s_lshl_b32 s34, s33, 6"); a("s_lshl_b32 s38, s24, 3"); a("s_add_u32 s34, s34, s38")
    a("s_lshl_b32 s34, s34, 12")
    a("s_lshl_b32 s38, s32, 8"); a("s_add_u32 s34, s34, s38"); a(f"s_add_u32 s58, s34, {WS_ZT}")
    a("v_lshrrev_b32 v3, 4, v2")
    a("v_and_b32 v4, 1, v3"); a("v_lshlrev_b32 v4, 1, v4"); a("v_lshrrev_b32 v5, 1, v3"); a("v_or_b32 v4, v4, v5")
    a("v_and_b32 v5, 15, v2")
    a("s_lshl_b32 s34, s32, 7"); a("s_lshl_b32 s38, s36, 6"); a("s_add_u32 s34, s34, s38"); a("s_lshl_b32 s38, s35, 5"); a("s_add_u32 s34, s34, s38")
    a("v_add_u32 v6, s34, v5"); a("v_lshlrev_b32 v7, 3, v6"); a("v_lshlrev_b32 v6, 11, v6")
    a("v_lshlrev_b32 v9, 4, v4"); a("v_add_u32 v6, v6, v9")
    a("s_lshl_b32 s38, s33, 7"); a("s_lshl_b32 s39, s37, 6"); a("s_add_u32 s38, s38, s39")
    a("v_add_u32 v112, s38, v6")
    a("v_add_u32 v113, 32768, v112")
    a("buffer_load_dwordx4 v[116:119], v112, s[40:43], 0 offen")
    a("buffer_load_dwordx4 v[120:123], v113, s[40:43], 0 offen")
    a(f"s_mov_b32 s38, {WS_ST}")
    a("buffer_load_dwordx2 v[124:125], v7, s[12:15], s38 offen sc1")
    a("buffer_load_dwordx2 v[126:127], v7, s[12:15], s38 offen offset:128 sc1")
    for _ in range(4): vm.issue(("X", 0))
    a("s_lshl_b32 s34, s35, 13"); a("s_lshl_b32 s38, s36, 12"); a("s_add_u32 s34, s34, s38")
    a("v_add_u32 v96, s34, v110"); a("v_add_u32 v97, 49152, v96"); a("v_add_u32 v98, 98304, v96")
    a("v_lshrrev_b32 v3, 4, v2"); a("v_bfe_u32 v6, v2, 2, 2"); a("v_and_b32 v7, 3, v2")
    a("v_and_b32 v9, 1, v3"); a("v_lshlrev_b32 v9, 1, v9"); a("v_lshrrev_b32 v10, 1, v6"); a("v_or_b32 v10, v9, v10")
    a("v_lshlrev_b32 v9, 3, v3"); a("v_add_u32 v9, v9, v6"); a("v_lshlrev_b32 v9, 7, v9")
    a("v_lshlrev_b32 v7, 3, v7"); a("v_add_u32 v9, v9, v7")
    a("s_lshl_b32 s34, s35, 12"); a("s_add_u32 s34, s34, 16384"); a("v_add_u32 v9, s34, v9")
    a("s_lshl_b32 s34, s37, 1")
    for ct in range(2):
        a(f"s_add_u32 s38, s34, {ct}")
        a("v_xor_b32 v11, s38, v10"); a("v_lshlrev_b32 v11, 5, v11")
        a(f"v_add_u32 v{100+3*ct}, v9, v11"); a(f"v_add_u32 v{101+3*ct}, 49152, v{100+3*ct}"); a(f"v_add_u32 v{102+3*ct}, 98304, v{100+3*ct}")
    a("v_lshlrev_b32 v9, 3, v4"); a("v_add_u32 v9, v9, v6"); a("v_lshlrev_b32 v9, 8, v9")
    a("v_add_u32 v9, v9, v7")
    a("s_lshl_b32 s34, s37, 13"); a("s_lshl_b32 s38, s36, 7"); a("s_add_u32 s34, s34, s38"); a("s_lshl_b32 s38, s35, 6"); a("s_add_u32 s34, s34, s38")
    a(f"s_add_u32 s34, s34, {G2_Z}")
    a("v_add_u32 v114, s34, v9")
    stamp(a, 10)
    poll_check(a, 32, 12, wait=True, mb=True)
    a("s_barrier")
    stamp(a, 11)
    for st in range(G2_R):
        issue2(g2_dma_t(st))
    n = vm.need(lambda t: t[0] in ("W", "T") and t[1] == 0)
    a(f"s_waitcnt vmcnt({n})")
    a("s_barrier")
    stamp(a, 12)
    for ins in g2_reads(0, 0):
        a(ins)
    texts = [g2_stage(it, vm) for it in range(G2_N)]
    info = emit_looped(a, texts[:IT2_POLL_Z], "G2La", "s39", 6)
    print("gemm2 a", info, file=sys.stderr)
    a.o.extend(sum(texts[IT2_POLL_Z:], []))
    stamp(a, 13)
    a("s_waitcnt vmcnt(0)")
    a("s_nop 7")
    a("s_barrier")
    a("s_lshl_b32 s34, s24, 12"); a("v_add_u32 v3, s34, v110")
    a("s_xor_b32 s34, s24, 4"); a("s_lshl_b32 s34, s34, 12"); a("v_add_u32 v4, s34, v110")
    a("s_cmp_eq_u32 s35, 0")
    a("s_cbranch_scc1 G2_x0")
    for i in range(4):
        a(f"ds_write_b128 v3, v[{G2_AB+4*i}:{G2_AB+4*i+3}] offset:{1024*i}")
    a("s_nop 1")
    for r in range(16):
        a(f"v_mov_b32 v{G2_AB+r}, v{G2_AB+16+r}")
    a("s_branch G2_x1")
    a.label("G2_x0")
    for i in range(4):
        a(f"ds_write_b128 v3, v[{G2_AB+16+4*i}:{G2_AB+16+4*i+3}] offset:{1024*i}")
    a.label("G2_x1")
    a("s_waitcnt lgkmcnt(0)")
    a("s_barrier")
    for i in range(4):
        a(f"ds_read_b128 v[{32+4*i}:{32+4*i+3}], v4 offset:{1024*i}")
    for t2 in range(2):
        a(f"ds_read_b64_tr_b16 v[{48+4*t2}:{49+4*t2}], v114 offset:{32*t2}")
        a(f"ds_read_b64_tr_b16 v[{50+4*t2}:{51+4*t2}], v114 offset:{32*t2 + 4*256}")
    a("s_waitcnt lgkmcnt(0)")
    for r in range(16):
        a(f"v_add_f32 v{G2_AB+r}, v{G2_AB+r}, v{32+r}")
    for t2 in range(2):
        b = G2_AB + 8 * t2
        a(f"v_cvt_pk_bf16_f32 v56, v{b}, v{b+1}"); a(f"v_cvt_pk_bf16_f32 v57, v{b+2}, v{b+3}")
        a(f"v_cvt_pk_bf16_f32 v58, v{b+4}, v{b+5}"); a(f"v_cvt_pk_bf16_f32 v59, v{b+6}, v{b+7}")
        a("s_nop 1")
        a("v_permlane16_swap_b32 v56, v58")
        a("v_permlane16_swap_b32 v57, v59")
        X = 116 + 4 * t2; Z = 48 + 4 * t2; M = 124 + 2 * t2; RS = M + 1
        for e in range(4):
            a(f"v_lshlrev_b32 v62, 16, v{X+e}"); a(f"v_and_b32 v63, 0xffff0000, v{X+e}")
            a(f"v_sub_f32 v60, v62, v{M}"); a(f"v_sub_f32 v61, v63, v{M}")
            a("v_cvt_pk_bf16_f32 v60, v60, v61")
            a("v_and_b32 v61, 0xffff0000, v60"); a("v_lshlrev_b32 v60, 16, v60")
            a(f"v_mul_f32 v60, v60, v{RS}"); a(f"v_mul_f32 v61, v61, v{RS}")
            a("v_cvt_pk_bf16_f32 v60, v60, v61")
            a("v_and_b32 v61, 0xffff0000, v60"); a("v_lshlrev_b32 v60, 16, v60")
            a(f"v_lshlrev_b32 v72, 16, v{Z+e}"); a(f"v_and_b32 v73, 0xffff0000, v{Z+e}")
            a("v_mul_f32 v60, v60, v72"); a("v_mul_f32 v61, v61, v73")
            a("v_cvt_pk_bf16_f32 v60, v60, v61")
            a("v_and_b32 v61, 0xffff0000, v60"); a("v_lshlrev_b32 v60, 16, v60")
            a("v_add_f32 v60, v60, v62"); a("v_add_f32 v61, v61, v63")
            a("v_cvt_pk_bf16_f32 v60, v60, v61")
            a("v_and_b32 v61, 0xffff0000, v60"); a("v_lshlrev_b32 v60, 16, v60")
            a(f"v_lshlrev_b32 v62, 16, v{56+e}"); a(f"v_and_b32 v63, 0xffff0000, v{56+e}")
            a("v_add_f32 v60, v60, v62"); a("v_add_f32 v61, v61, v63")
            a(f"v_cvt_pk_bf16_f32 v{64+4*t2+e}, v60, v61")
        a(f"buffer_store_dwordx4 v[{64+4*t2}:{67+4*t2}], v{112+t2}, s[20:23], 0 offen")
    if TIMING:
        a("s_waitcnt vmcnt(0)")
    stamp(a, 14)
    a.label("F_end")
    a("s_endpgm")


def main(out):
    a = Asm()
    hdr = open("parallel_sum__ssm_conv_h3__glu_gated_swiglu__prompt.s.ref").read().split("; Override")[0]
    a.o.append(hdr.rstrip("\n"))
    a("; @launch grid=(256,1,1) block=(512,1,1) lds=163840")
    a('.amdgcn_target "amdgcn-amd-amdhsa--gfx950"')
    a(".text")
    gen_fused(a, NAME)
    a('.section .rodata,"a"')
    a(".p2align 6")
    kernel_desc(a, NAME, 256, 102)
    open(out, "w").write(a.text())


if __name__ == "__main__":
    if len(sys.argv) > 2 and "T" in sys.argv[2]:
        TIMING = True
    if len(sys.argv) > 3:
        EXP = sys.argv[3]
    main(sys.argv[1] if len(sys.argv) > 1 else "k4.s")
```
